```python
import torch

def _softmax(x, axis=-1):
    return torch.softmax(x, dim=axis)
def _gelu(x):
    return torch.nn.functional.gelu(x, approximate="tanh")
def _silu(x):
    return torch.nn.functional.silu(x)
def _sigmoid(x):
    return torch.sigmoid(x)
def _layernorm(x, axis=-1, eps=1e-5):
    m = x.mean(dim=axis, keepdim=True)
    v = x.var(dim=axis, keepdim=True, unbiased=False)
    return (x - m) / torch.sqrt(v + eps)
def _scatter_add(tgt, idx, src, axis=0):
    return tgt.clone().index_add_(axis, idx, src)
def _segment_sum(src, seg, n):
    out = torch.zeros((n,) + src.shape[1:], dtype=src.dtype)
    return out.index_add_(0, seg, src)
def _pad(x, pw):
    flat = tuple(v for pair in reversed(pw) for v in pair)
    return torch.nn.functional.pad(x, flat)

kernel_name = 'interleave_layers__ssm_conv_s4d__grouped_kv_mqa__prompt'

def setup_inputs():

    _w = (lambda a: (lambda t: t.to(torch.bfloat16) if t.is_floating_point() else t)(torch.as_tensor(a)))
    def _A_setup():
        Bsz, L, D, N = 1, 2048, 640, 128
        return {
            "u": _w((lambda *s: torch.randn(*s, dtype=torch.bfloat16) * 0.05)(Bsz, L, D)),
            "log_A_real": _w((lambda *s: torch.randn(*s, dtype=torch.bfloat16) * 3.2)(D, N) * 0.5),
            "A_imag": _w((lambda *s: torch.randn(*s, dtype=torch.bfloat16) * 0.05)(D, N) * 3.14),
            "C_real": _w((lambda *s: torch.randn(*s, dtype=torch.bfloat16) * 0.05)(D, N) / N ** 0.5),
            "C_imag": _w((lambda *s: torch.randn(*s, dtype=torch.bfloat16) * 0.05)(D, N) / N ** 0.5),
            "log_dt": _w((lambda *s: torch.randn(*s, dtype=torch.bfloat16) * 0.05)(D) * 0.5 - 4.0),
            "D_skip": _w((lambda *s: torch.randn(*s, dtype=torch.bfloat16) * 0.05)(D)),
        }
    _A_in = _A_setup()

    def _B_setup():
        B, S, D, H = 1, 2048, 640, 32
        Dh = D // H
        return {
            "x": _w((lambda *s: torch.randn(*s, dtype=torch.bfloat16) * 0.05)(B, S, D)),
            "wq": _w((lambda *s: torch.randn(*s, dtype=torch.bfloat16) * 0.05)(D, H * Dh)),
            "wk": _w((lambda *s: torch.randn(*s, dtype=torch.bfloat16) * 0.05)(D, Dh)),
            "wv": _w((lambda *s: torch.randn(*s, dtype=torch.bfloat16) * 0.05)(D, Dh)),
            "wo": _w((lambda *s: torch.randn(*s, dtype=torch.bfloat16) * 0.05)(H * Dh, D)),
        }
    _B_in = _B_setup()

    return {
        "A_u": _A_in["u"],
        "A_log_A_real": _A_in["log_A_real"],
        "A_A_imag": _A_in["A_imag"],
        "A_C_real": _A_in["C_real"],
        "A_C_imag": _A_in["C_imag"],
        "A_log_dt": _A_in["log_dt"],
        "A_D_skip": _A_in["D_skip"],
        "B_x": _B_in["x"],
        "B_wq": _B_in["wq"],
        "B_wk": _B_in["wk"],
        "B_wv": _B_in["wv"],
        "B_wo": _B_in["wo"],
    }

def reference(A_u, A_log_A_real, A_A_imag, A_C_real, A_C_imag, A_log_dt, A_D_skip, B_x, B_wq, B_wk, B_wv, B_wo):
    def _A_ref(u, log_A_real, A_imag, C_real, C_imag, log_dt, D_skip):
        L = u.shape[1]
        dt = torch.exp(log_dt)
        A = -torch.exp(log_A_real) + 1j * A_imag
        C = (C_real + 1j * C_imag) * dt[:, None]
        pos = (lambda x, dt: x.to(dt))(torch.arange(L), log_dt.dtype)
        P = torch.exp((A * dt[:, None])[:, :, None] * pos[None, None, :])
        K = 2.0 * torch.einsum("dn,dnl->dl", C, P).real
        L2 = 2 * L
        u_t = (lambda x, *d: x.permute(*d))(u, 0, 2, 1)
        Kf = (lambda x, *a, **k: torch.fft.rfft(x.float(), *a, **k))(K, L2)
        Uf = (lambda x, *a, **k: torch.fft.rfft(x.float(), *a, **k))(u_t, L2)
        y = (lambda x, *a, **k: torch.fft.irfft(x, *a, **k).to(torch.bfloat16))(Uf * Kf[None, :, :], L2)[:, :, :L]
        y = (lambda x, *d: x.permute(*d))(y, 0, 2, 1)
        return y + u * D_skip[None, None, :]

    def _B_ref(x, wq, wk, wv, wo):
        B, S, D = x.shape
        H = 32
        Dh = D // H
        q = (lambda x, *d: x.permute(*d))((x @ wq).reshape(B, S, H, Dh), 0, 2, 1, 3)
        k = x @ wk
        v = x @ wv
        scores = torch.einsum("bhqd,bkd->bhqk", q, k) * (Dh ** -0.5)
        p = _softmax(scores, axis=-1)
        o = torch.einsum("bhqk,bkd->bhqd", p, v)
        return (lambda x, *d: x.permute(*d))(o, 0, 2, 1, 3).reshape(B, S, H * Dh) @ wo

    x = A_u
    x = x + _A_ref(_layernorm(x, axis=-1), A_log_A_real, A_A_imag, A_C_real, A_C_imag, A_log_dt, A_D_skip)
    x = x + _B_ref(_layernorm(x, axis=-1), B_wq, B_wk, B_wv, B_wo)
    x = x + _A_ref(_layernorm(x, axis=-1), A_log_A_real, A_A_imag, A_C_real, A_C_imag, A_log_dt, A_D_skip)
    x = x + _B_ref(_layernorm(x, axis=-1), B_wq, B_wk, B_wv, B_wo)
    return x
```

```python
from gen_common import *
ATT_LDS = 163840

def gen_attn(name):
    k = K(name); e = k.e
    k.lab(name)
    lend = name + "_end"
    e("s_cmp_ge_u32 s2, 256")
    e(f"s_cbranch_scc1 {lend}")
    e("s_load_dwordx2 s[6:7], s[0:1], 112")
    e("s_waitcnt lgkmcnt(0)")
    k.srd(8, 6, WS_KV, KV_BYTES)
    k.srd(12, 6, WS_Q, Q_BYTES)
    k.srd(16, 6, WS_O, Q_BYTES)
    e("v_lshlrev_b32 v1, 4, v0")
    for i in range(20):
        e(f"s_mov_b32 s20, {i*8192}")
        e(f"buffer_load_dwordx4 v[{128+4*i}:{131+4*i}], v1, s[8:11], s20 offen")
    e("v_lshrrev_b32 v2, 6, v0")
    e("s_nop 0")
    e("v_readfirstlane_b32 s3, v2")
    e("s_lshl_b32 s4, s2, 3")
    e("s_add_u32 s4, s4, s3")
    e("s_mul_i32 s5, s4, 1280")
    e("v_and_b32 v3, 31, v0")
    e("v_bfe_u32 v4, v0, 5, 1")
    e("v_mul_u32_u24 v5, 40, v3")
    e("v_lshl_add_u32 v6, v4, 4, v5")
    e("buffer_load_dwordx4 v[8:11], v6, s[12:15], s5 offen")
    e("buffer_load_dwordx2 v[12:13], v5, s[12:15], s5 offen offset:32")
    e("v_add_u32 v88, 0x10000, v1")
    e("v_add_u32 v89, 0x20000, v1")
    for i in range(20):
        e(f"s_waitcnt vmcnt({21 - i})")
        ar = (1, 88, 89)[i // 8]
        e(f"ds_write_b128 v{ar}, v[{128+4*i}:{131+4*i}] offset:{(i%8)*8192}")
    e("s_waitcnt vmcnt(0)")
    e("v_cmp_eq_u32 vcc, 0, v4")
    e("v_mov_b32 v14, 0\nv_mov_b32 v15, 0")
    e("v_cndmask_b32 v12, 0, v12, vcc")
    e("v_cndmask_b32 v13, 0, v13, vcc")
    for b in (20, 28): e(f"v_mov_b32 v{b+2}, 0\nv_mov_b32 v{b+3}, 0")
    e("v_cmp_eq_u32 vcc, 20, v3")
    e("v_mov_b32 v7, 0x3f803f80")
    for r in range(32, 48): e(f"v_cndmask_b32 v{r}, 0, v7, vcc")
    for r in range(16): e(f"v_mov_b32 v{96+r}, 0\nv_mov_b32 v{112+r}, 0")
    e("v_and_b32 v88, 63, v0")
    e("v_lshlrev_b32 v88, 4, v88")
    e("v_lshlrev_b32 v89, 3, v3")
    e("v_add_u32 v89, 0x10000, v89")
    e("v_mul_u32_u24 v90, 320, v4")
    e("v_lshl_add_u32 v90, v3, 4, v90")
    e("v_add_u32 v90, 0x14000, v90")
    e("s_mov_b32 s22, 0x000fffff")
    e("s_mov_b32 s23, 0x000fffff")
    e("s_mov_b32 s24, 0x41000000")
    e("s_waitcnt lgkmcnt(0)")
    e("s_barrier")
    KB = (16, 24); VB = (32, 40); SB = (48, 64)
    def ldK(tile_off, kb):
        e(f"ds_read_b128 v[{kb}:{kb+3}], v88 offset:{tile_off*1024}")
        e(f"ds_read_b64 v[{kb+4}:{kb+5}], v89 offset:{tile_off*256}")
    def ldV(tile_off, vb):
        e("s_mov_b64 exec, s[22:23]")
        e(f"ds_read_b128 v[{vb}:{vb+3}], v90 offset:{tile_off*1280}")
        e(f"ds_read_b128 v[{vb+4}:{vb+7}], v90 offset:{tile_off*1280+640}")
        e("s_mov_b64 exec, -1")
    def smfma(kb, sb):
        e(f"v_mfma_f32_32x32x16_bf16 v[{sb}:{sb+15}], v[{kb}:{kb+3}], v[8:11], v[112:127]")
        e(f"v_mfma_f32_32x32x16_bf16 v[{sb}:{sb+15}], v[{kb+4}:{kb+7}], v[12:15], v[{sb}:{sb+15}]")
    def maxtree(sb, dst):
        e(f"v_max3_f32 v{dst}, v{sb}, v{sb+1}, v{sb+2}")
        for j in range(3, 15, 2): e(f"v_max3_f32 v{dst}, v{dst}, v{sb+j}, v{sb+j+1}")
        e(f"v_max_f32 v{dst}, v{dst}, v{sb+15}")
    def crosshalf_max(a, b):
        e(f"v_mov_b32 v{b}, v{a}")
        e("s_nop 1")
        e(f"v_permlane32_swap_b32 v{a}, v{b}")
        e("s_nop 1")
        e(f"v_max_f32 v{a}, v{a}, v{b}")
    ldK(0, KB[0]); ldV(0, VB[0]); ldK(1, KB[1])
    e("s_waitcnt lgkmcnt(4)")
    smfma(KB[0], SB[0])
    e("s_nop 15\ns_nop 3")
    maxtree(SB[0], 92)
    crosshalf_max(92, 93)
    for r in range(16):
        e(f"v_sub_f32 v{SB[0]+r}, v{SB[0]+r}, v92")
        e(f"v_sub_f32 v{112+r}, 0, v92")
    e("s_mov_b32 s25, 0")
    lptop = k.newlab("loop")
    rare = []
    k.lab(lptop)
    for half in range(2):
        sX = SB[half]; sY = SB[half ^ 1]
        kbn = KB[half ^ 1]
        kbl = KB[half]
        vbc = VB[half]; vbn = VB[half ^ 1]
        e("s_waitcnt lgkmcnt(2)")
        smfma(kbn, sY)
        ldK(half + 2, kbl)
        ldV(half + 1, vbn)
        maxtree(sX, 92)
        lr = k.newlab("rare"); lb = k.newlab("back")
        e("v_cmp_lt_f32 vcc, s24, v92")
        e(f"s_cbranch_vccnz {lr}")
        k.lab(lb)
        rare.append((lr, lb, sX, sY))
        for r in range(16): e(f"v_exp_f32 v{sX+r}, v{sX+r}")
        e("s_nop 0")
        for j in range(8): e(f"v_cvt_pk_bf16_f32 v{80+j}, v{sX+2*j}, v{sX+2*j+1}")
        e("s_waitcnt lgkmcnt(4)")
        e("s_nop 0")
        e(f"v_mfma_f32_32x32x16_bf16 v[96:111], v[{vbc}:{vbc+3}], v[80:83], v[96:111]")
        e(f"v_mfma_f32_32x32x16_bf16 v[96:111], v[{vbc+4}:{vbc+7}], v[84:87], v[96:111]")
    e("v_add_u32 v88, 2048, v88")
    e("v_add_u32 v89, 512, v89")
    e("v_add_u32 v90, 2560, v90")
    e("s_add_u32 s25, s25, 1")
    e("s_cmp_lt_u32 s25, 32")
    e(f"s_cbranch_scc1 {lptop}")
    e("s_waitcnt lgkmcnt(0)")
    e("s_nop 15\ns_nop 3")
    e("v_mov_b32 v92, v104")
    e("v_mov_b32 v93, v104")
    e("s_nop 1")
    e("v_permlane32_swap_b32 v92, v93")
    e("s_nop 1")
    e("v_rcp_f32 v93, v93")
    e("s_nop 0")
    for r in range(12): e(f"v_mul_f32 v{96+r}, v{96+r}, v93")
    for j in range(6): e(f"v_cvt_pk_bf16_f32 v{80+j}, v{96+2*j}, v{97+2*j}")
    e("v_lshl_add_u32 v6, v4, 3, v5")
    e("buffer_store_dwordx2 v[80:81], v6, s[16:19], s5 offen")
    e("buffer_store_dwordx2 v[82:83], v6, s[16:19], s5 offen offset:16")
    e("v_cmp_eq_u32 vcc, 0, v4")
    e("s_and_saveexec_b64 s[26:27], vcc")
    e("buffer_store_dwordx2 v[84:85], v6, s[16:19], s5 offen offset:32")
    e("s_endpgm")
    for (lr, lb, sX, sY) in rare:
        k.lab(lr)
        e("s_nop 15\ns_nop 15")
        e("v_max_f32 v92, 0, v92")
        crosshalf_max(92, 93)
        e("v_sub_f32 v94, 0, v92")
        e("v_exp_f32 v94, v94")
        e("v_sub_f32 v112, v112, v92")
        for r in range(1, 16): e(f"v_mov_b32 v{112+r}, v112")
        for r in range(16):
            e(f"v_sub_f32 v{sX+r}, v{sX+r}, v92")
            e(f"v_sub_f32 v{sY+r}, v{sY+r}, v92")
            e(f"v_mul_f32 v{96+r}, v{96+r}, v94")
        e("s_nop 3")
        e(f"s_branch {lb}")
    k.lab(lend)
    e("s_endpgm")
    return k
```

```python
L = 2048; D = 640; NST = 128
WS_XT0 = 0x0
WS_XT1 = 0x280000
WS_XT2 = 0x500000
WS_XT3 = 0x780000
XT_BYTES = D * L * 2
WS_KR = 0xA00000; KRL = 2112; KR_BYTES = D * KRL * 2
WS_WQKVT = 0xD00000; WQKVT_BYTES = 704 * 1280
WS_WOT = 0xE00000; WOT_BYTES = 640 * 1280
WS_Q = 0xF00000; Q_BYTES = L * D * 2
WS_O = 0x1180000
WS_KV = 0x1400000; KV_BYTES = 163840
WS_ST0 = 0x1430000; ST_BYTES = 5 * L * 8
WS_ST1 = 0x1450000
WS_END = 0x1470000

class K:
    def __init__(self, name):
        self.name = name; self.t = []; self.nlab = 0
    def e(self, s):
        for ln in s.strip().split("\n"):
            ln = ln.strip()
            if ln: self.t.append("    " + ln)
    def lab(self, l): self.t.append(l + ":")
    def newlab(self, p="L"):
        self.nlab += 1; return f"{self.name}_{p}{self.nlab}"
    def text(self): return "\n".join(self.t)
    def ldarg(self, sreg, slot): self.e(f"s_load_dwordx2 s[{sreg}:{sreg+1}], s[0:1], {slot*8}")
    def srd(self, s, base, off, size):
        if off:
            self.e(f"s_add_u32 s{s}, s{base}, {off:#x}")
            self.e(f"s_addc_u32 s{s+1}, s{base+1}, 0")
        else:
            self.e(f"s_mov_b32 s{s}, s{base}")
            self.e(f"s_mov_b32 s{s+1}, s{base+1}")
        self.e(f"s_mov_b32 s{s+2}, {size:#x}")
        self.e(f"s_mov_b32 s{s+3}, 0x00020000")
    def bfround(self, v, tmp=None):
        self.e(f"v_cvt_pk_bf16_f32 v{v}, v{v}, v{v}")
        self.e(f"v_lshlrev_b32 v{v}, 16, v{v}")

def descriptor(name, vgpr, sgpr=96):
    acc = (vgpr + 3) // 4 * 4
    return f""".amdhsa_kernel {name}
  .amdhsa_next_free_vgpr {vgpr}
  .amdhsa_next_free_sgpr {sgpr}
  .amdhsa_accum_offset {acc}
  .amdhsa_group_segment_fixed_size 0
  .amdhsa_kernarg_size 120
  .amdhsa_user_sgpr_count 2
  .amdhsa_user_sgpr_kernarg_segment_ptr 1
  .amdhsa_system_sgpr_workgroup_id_x 1
  .amdhsa_float_denorm_mode_32 3
.end_amdhsa_kernel
"""
```

```python
from gen_common import *

C_KR = 0
C_U = 4352
C_P = 12288
CONV_LDS = 45056

def gen_conv(name, ws_xin, ws_xout, ws_st):
    k = K(name); e = k.e
    k.lab(name)
    lend = name + "_end"
    e("s_cmp_ge_u32 s2, 640")
    e(f"s_cbranch_scc1 {lend}")
    e("s_load_dwordx2 s[4:5], s[0:1], 48")
    e("s_load_dwordx2 s[6:7], s[0:1], 112")
    e("s_waitcnt lgkmcnt(0)")
    k.srd(8, 6, ws_xin, XT_BYTES)
    k.srd(12, 6, ws_xout, XT_BYTES)
    k.srd(16, 6, ws_st, ST_BYTES)
    k.srd(20, 6, WS_KR, KR_BYTES)
    k.srd(24, 4, 0, 1280)
    e("s_lshl_b32 s28, s2, 12")
    e(f"s_mul_i32 s29, s2, {KRL*2}")
    e("s_lshl_b32 s30, s2, 1")
    e("v_lshlrev_b32 v1, 4, v0")
    e("v_lshlrev_b32 v2, 6, v0")
    e("v_mov_b32 v3, 0")
    e("buffer_load_dwordx4 v[4:7], v1, s[8:11], s28 offen")
    e("buffer_load_dwordx4 v[8:11], v1, s[20:23], s29 offen")
    e("v_and_b32 v12, 7, v0")
    e("v_lshlrev_b32 v12, 4, v12")
    e("v_add_u32 v12, 4096, v12")
    e("buffer_load_dwordx4 v[16:19], v12, s[20:23], s29 offen")
    e("buffer_load_ushort v13, v3, s[24:27], s30 offen")
    for g in range(5):
        e(f"s_mov_b32 s31, {g*16384}")
        for q in range(4):
            b = 32 + 16*g + 4*q
            e(f"buffer_load_dwordx4 v[{b}:{b+3}], v2, s[16:19], s31 offen offset:{16*q}")
    e("v_mov_b32 v20, 0\nv_mov_b32 v21, 0\nv_mov_b32 v22, 0\nv_mov_b32 v23, 0")
    e("v_cmp_gt_u32 vcc, 155, v0")
    e("s_and_saveexec_b64 s[32:33], vcc")
    e(f"ds_write_b128 v1, v[20:23] offset:{C_U}")
    e("s_mov_b64 exec, s[32:33]")
    e("s_waitcnt vmcnt(20)")
    e(f"ds_write_b128 v1, v[8:11] offset:{C_KR}")
    e(f"ds_write_b128 v12, v[16:19] offset:{C_KR}")
    e("s_waitcnt vmcnt(0)")
    for j in range(4):
        e(f"v_lshlrev_b32 v{112+2*j}, 16, v{4+j}")
        e(f"v_and_b32 v{113+2*j}, 0xffff0000, v{4+j}")
    e("s_mov_b32 s34, 0x3acccccd")
    e("s_mov_b32 s35, 0x3c000000")
    e("s_mov_b32 s36, 0x43000000")
    e("s_mov_b32 s37, 0x3727c5ac")
    for p in range(8):
        s1 = lambda g: 32 + 16*g + 2*p
        m2 = lambda g: 33 + 16*g + 2*p
        e(f"v_add_f32 v128, v{s1(0)}, v{s1(1)}")
        e(f"v_add_f32 v129, v{s1(2)}, v{s1(3)}")
        e(f"v_add_f32 v128, v128, v{s1(4)}")
        e("v_add_f32 v128, v128, v129")
        e("v_mul_f32 v128, s34, v128")
        e(f"v_add_f32 v129, v{m2(0)}, v{m2(1)}")
        e(f"v_add_f32 v130, v{m2(2)}, v{m2(3)}")
        e(f"v_add_f32 v129, v129, v{m2(4)}")
        e("v_add_f32 v129, v129, v130")
        e("v_mov_b32 v131, 0")
        for g in range(5):
            e(f"v_fma_f32 v130, v{s1(g)}, s35, -v128")
            e("v_fma_f32 v131, v130, v130, v131")
        e("v_fma_f32 v129, v131, s36, v129")
        e("v_mul_f32 v129, s34, v129")
        k.bfround(128); k.bfround(129)
        e("v_add_f32 v129, s37, v129")
        k.bfround(129)
        e("v_sqrt_f32 v129, v129")
        e("s_nop 0")
        k.bfround(129)
        e("v_rcp_f32 v129, v129")
        e(f"v_sub_f32 v130, v{112+p}, v128")
        k.bfround(130)
        e(f"v_mul_f32 v{120+p}, v130, v129")
    for j in range(4):
        e(f"v_cvt_pk_bf16_f32 v{24+j}, v{120+2*j}, v{121+2*j}")
    e("v_lshrrev_b32 v28, 2, v0")
    e("v_mul_u32_u24 v28, 80, v28")
    e("v_and_b32 v29, 3, v0")
    e("v_lshl_add_u32 v28, v29, 4, v28")
    e(f"ds_write_b128 v28, v[24:27] offset:{C_U + 31*80}")
    for j in range(4):
        e(f"v_lshlrev_b32 v{120+2*j}, 16, v{24+j}")
        e(f"v_and_b32 v{121+2*j}, 0xffff0000, v{24+j}")
    e("v_lshlrev_b32 v13, 16, v13")
    e("v_lshrrev_b32 v30, 6, v0")
    e("s_nop 0")
    e("v_readfirstlane_b32 s40, v30")
    e("v_and_b32 v31, 31, v0")
    e("v_bfe_u32 v14, v0, 5, 1")
    e("v_lshlrev_b32 v15, 10, v30")
    e(f"v_sub_u32 v15, {2*(2047 - 32*15)}, v15")
    e("v_lshlrev_b32 v28, 1, v31")
    e("v_sub_u32 v15, v15, v28")
    e("v_lshl_add_u32 v15, v14, 4, v15")
    e("v_lshlrev_b32 v28, 4, v30")
    e("v_sub_u32 v28, v31, v28")
    e("v_add_u32 v28, 48, v28")
    e("v_mul_u32_u24 v28, 80, v28")
    e("v_lshl_add_u32 v28, v14, 4, v28")
    e(f"v_add_u32 v28, {C_U}, v28")
    for r in range(32): e(f"v_mov_b32 v{128+r}, 0")
    e("s_waitcnt lgkmcnt(0)")
    e("s_barrier")
    lhi = k.newlab("hi"); ljoin = k.newlab("join")
    e("s_cmp_ge_u32 s40, 2")
    e(f"s_cbranch_scc1 {lhi}")
    for variant in (0, 1):
        if variant == 1: k.lab(lhi)
        def loads(j, sb):
            b = 32 + 24*sb
            offB = 80*(15-j); offA = 64*(15-j)
            e(f"ds_read_b128 v[{b}:{b+3}], v28 offset:{offB}")
            e(f"ds_read_b128 v[{b+4}:{b+7}], v28 offset:{offB+32}")
            e(f"ds_read_b128 v[{b+8}:{b+11}], v15 offset:{offA}")
            e(f"ds_read_b128 v[{b+12}:{b+15}], v15 offset:{offA+32}")
            if variant:
                e(f"ds_read_b128 v[{b+16}:{b+19}], v15 offset:{offA+2048}")
                e(f"ds_read_b128 v[{b+20}:{b+23}], v15 offset:{offA+2048+32}")
        nl = 6 if variant else 4
        loads(0, 0)
        for j in range(16):
            sb = j & 1
            if j < 15:
                loads(j+1, sb ^ 1)
                e(f"s_waitcnt lgkmcnt({nl})")
            else:
                e("s_waitcnt lgkmcnt(0)")
            b = 32 + 24*sb
            e(f"v_mfma_f32_32x32x16_bf16 v[144:159], v[{b+8}:{b+11}], v[{b}:{b+3}], v[144:159]")
            if variant: e(f"v_mfma_f32_32x32x16_bf16 v[128:143], v[{b+16}:{b+19}], v[{b}:{b+3}], v[128:143]")
            e(f"v_mfma_f32_32x32x16_bf16 v[144:159], v[{b+12}:{b+15}], v[{b+4}:{b+7}], v[144:159]")
            if variant: e(f"v_mfma_f32_32x32x16_bf16 v[128:143], v[{b+20}:{b+23}], v[{b+4}:{b+7}], v[128:143]")
        if variant == 0: e(f"s_branch {ljoin}")
    k.lab(ljoin)
    e("s_nop 15\ns_nop 3")
    e("v_lshlrev_b32 v28, 13, v30")
    e("v_lshl_add_u32 v28, v31, 7, v28")
    e("v_lshl_add_u32 v28, v14, 4, v28")
    for tau in range(2):
        for g in range(4):
            b = 128 + 16*tau + 4*g
            e(f"ds_write_b128 v28, v[{b}:{b+3}] offset:{C_P + tau*4096 + 32*g}")
    e("s_waitcnt lgkmcnt(0)")
    e("s_barrier")
    e("v_lshlrev_b32 v28, 5, v0")
    for w in range(4):
        e(f"ds_read_b128 v[{32+8*w}:{35+8*w}], v28 offset:{C_P + w*8192}")
        e(f"ds_read_b128 v[{36+8*w}:{39+8*w}], v28 offset:{C_P + w*8192 + 16}")
    e("s_waitcnt lgkmcnt(0)")
    for p in range(8):
        e(f"v_add_f32 v{32+p}, v{32+p}, v{40+p}")
        e(f"v_add_f32 v{48+p}, v{48+p}, v{56+p}")
        e(f"v_add_f32 v{32+p}, v{32+p}, v{48+p}")
        k.bfround(32+p)
        e(f"v_mul_f32 v{40+p}, v{120+p}, v13")
        k.bfround(40+p)
        e(f"v_add_f32 v{32+p}, v{32+p}, v{40+p}")
        k.bfround(32+p)
        e(f"v_add_f32 v{32+p}, v{32+p}, v{112+p}")
    for j in range(4):
        e(f"v_cvt_pk_bf16_f32 v{24+j}, v{32+2*j}, v{33+2*j}")
    e("buffer_store_dwordx4 v[24:27], v1, s[12:15], s28 offen")
    k.lab(lend)
    e("s_endpgm")
    return k
```

```python
from gen_common import *
OPR_LDS = 1024

def gen_oproj(name, ws_xin, ws_xout, ws_st, final):
    k = K(name); e = k.e
    k.lab(name)
    lend = name + "_end"
    e("s_cmp_ge_u32 s2, 320")
    e(f"s_cbranch_scc1 {lend}")
    e("s_load_dwordx2 s[6:7], s[0:1], 112")
    e("s_load_dwordx2 s[4:5], s[0:1], 96")
    e("s_waitcnt lgkmcnt(0)")
    k.srd(8, 6, WS_WOT, WOT_BYTES)
    k.srd(12, 6, WS_O, Q_BYTES)
    k.srd(16, 6, ws_xin, XT_BYTES)
    if final: k.srd(20, 4, 0, XT_BYTES)
    else:
        k.srd(20, 6, ws_xout, XT_BYTES)
        k.srd(24, 6, ws_st, ST_BYTES)
    e("s_mul_i32 s3, s2, 52429")
    e("s_lshr_b32 s3, s3, 18")
    e("s_mul_i32 s28, s3, 5")
    e("s_sub_u32 s28, s2, s28")
    e("v_lshrrev_b32 v1, 6, v0")
    e("s_nop 0")
    e("v_readfirstlane_b32 s29, v1")
    e("s_lshl_b32 s30, s28, 7")
    e("s_lshl_b32 s31, s29, 5")
    e("s_add_u32 s30, s30, s31")
    e("s_mul_i32 s31, s30, 1280")
    e("s_mul_i32 s32, s3, 40960")
    e("v_and_b32 v2, 31, v0")
    e("v_bfe_u32 v3, v0, 5, 1")
    e("v_mul_u32_u24 v4, 1280, v2")
    e("v_lshl_add_u32 v4, v3, 4, v4")
    e("v_lshlrev_b32 v5, 14, v3")
    e("v_lshl_add_u32 v5, v2, 1, v5")
    e("s_lshl_b32 s33, s30, 12")
    e("s_lshl_b32 s34, s3, 6")
    e("s_add_u32 s33, s33, s34")
    for r in range(16):
        e(f"s_add_u32 s35, s33, {(8*(r>>2) + (r&3))*4096}")
        e(f"buffer_load_ushort v{160+r}, v5, s[16:19], s35 offen")
    for r in range(16): e(f"v_mov_b32 v{144+r}, 0")
    def loads(c):
        b = c & 1
        for s in range(8):
            e(f"buffer_load_dwordx4 v[{16+64*b+4*s}:{19+64*b+4*s}], v4, s[8:11], s31 offen offset:{32*(8*c+s)}")
            e(f"buffer_load_dwordx4 v[{48+64*b+4*s}:{51+64*b+4*s}], v4, s[12:15], s32 offen offset:{32*(8*c+s)}")
    loads(0)
    for c in range(5):
        b = c & 1
        if c < 4: loads(c+1)
        for s in range(8):
            rem = (16 if c < 4 else 0) + 2*(7 - s)
            e(f"s_waitcnt vmcnt({rem})")
            e(f"v_mfma_f32_32x32x16_bf16 v[144:159], v[{16+64*b+4*s}:{19+64*b+4*s}], v[{48+64*b+4*s}:{51+64*b+4*s}], v[144:159]")
    e("s_nop 15\ns_nop 3")
    for r in range(16):
        k.bfround(144+r)
        e(f"v_lshlrev_b32 v{160+r}, 16, v{160+r}")
        e(f"v_add_f32 v{144+r}, v{144+r}, v{160+r}")
    if final:
        for j in range(8): e(f"v_cvt_pk_bf16_f32 v{160+j}, v{144+2*j}, v{145+2*j}")
        e("v_mul_u32_u24 v4, 1280, v2")
        e("v_lshl_add_u32 v4, v3, 3, v4")
        e("s_lshl_b32 s35, s30, 1")
        e("s_add_u32 s35, s35, s32")
        for g in range(4):
            e(f"buffer_store_dwordx2 v[{160+2*g}:{161+2*g}], v4, s[20:23], s35 offen offset:{16*g}")
    else:
        for r in range(16):
            e(f"v_cvt_pk_bf16_f32 v{160+r}, v{144+r}, v{144+r}")
            e(f"v_lshlrev_b32 v{144+r}, 16, v{160+r}")
        for r in range(16):
            e(f"s_add_u32 s35, s33, {(8*(r>>2) + (r&3))*4096}")
            e(f"buffer_store_short v{160+r}, v5, s[20:23], s35 offen")
        def wgsum(src, off):
            e(f"v_mov_b32 v9, v{src}")
            e("s_nop 1")
            e(f"v_permlane32_swap_b32 v{src}, v9")
            e("s_nop 1")
            e(f"v_add_f32 v{src}, v{src}, v9")
            e("v_lshlrev_b32 v10, 7, v1")
            e("v_lshl_add_u32 v10, v2, 2, v10")
            e(f"ds_write_b32 v10, v{src} offset:{off}")
            e("s_waitcnt lgkmcnt(0)")
            e("s_barrier")
            e("v_lshlrev_b32 v10, 2, v2")
            for w in range(4): e(f"ds_read_b32 v{11+w}, v10 offset:{off + 128*w}")
            e("s_waitcnt lgkmcnt(0)")
            e("v_add_f32 v11, v11, v12")
            e("v_add_f32 v13, v13, v14")
            e(f"v_add_f32 v{src}, v11, v13")
        e("v_add_f32 v6, v144, v145")
        for r in range(2, 16): e(f"v_add_f32 v6, v6, v{144+r}")
        wgsum(6, 0)
        e("v_mul_f32 v7, 0x3c000000, v6")
        e("v_mov_b32 v8, 0")
        for r in range(16):
            e(f"v_sub_f32 v{144+r}, v{144+r}, v7")
            e(f"v_fma_f32 v8, v{144+r}, v{144+r}, v8")
        wgsum(8, 512)
        e("v_mov_b32 v7, v8")
        e("v_cmp_gt_u32 vcc, 32, v0")
        e("s_and_saveexec_b64 s[36:37], vcc")
        e(f"s_cbranch_execz {lend}")
        e("v_lshlrev_b32 v10, 3, v2")
        e("s_lshl_b32 s35, s28, 14")
        e("s_lshl_b32 s38, s3, 8")
        e("s_add_u32 s35, s35, s38")
        e("buffer_store_dwordx2 v[6:7], v10, s[24:27], s35 offen")
    k.lab(lend)
    e("s_endpgm")
    return k
```

```python
from gen_common import *

def gen_prep():
    k = K("prep_kernel")
    e = k.e
    k.lab("prep_kernel")
    L_kgen = "prep_kgen"; L_tile = "prep_tile"; L_kv = "prep_kv"; L_end = "prep_end"
    e("s_load_dwordx16 s[16:31], s[0:1], 0")
    e("s_load_dwordx8 s[32:39], s[0:1], 64")
    e("s_load_dwordx2 s[40:41], s[0:1], 112")
    e("s_waitcnt lgkmcnt(0)")
    e("s_cmp_lt_u32 s2, 640")
    e(f"s_cbranch_scc1 {L_kgen}")
    e("s_cmp_lt_u32 s2, 900")
    e(f"s_cbranch_scc1 {L_tile}")
    e("s_cmp_eq_u32 s2, 900")
    e(f"s_cbranch_scc1 {L_kv}")
    e("s_endpgm")

    k.lab(L_kgen)
    k.srd(44, 18, 0, 640*128*2)
    k.srd(48, 20, 0, 640*128*2)
    k.srd(52, 22, 0, 640*128*2)
    k.srd(56, 24, 0, 640*128*2)
    k.srd(60, 26, 0, 640*2)
    k.srd(64, 40, WS_KR, KR_BYTES)
    e("s_lshl_b32 s3, s2, 8")
    e("s_lshl_b32 s4, s2, 1")
    e("v_and_b32 v1, 127, v0")
    e("v_lshlrev_b32 v1, 1, v1")
    e("v_mov_b32 v2, 0")
    e("buffer_load_ushort v4, v1, s[44:47], s3 offen")
    e("buffer_load_ushort v5, v1, s[48:51], s3 offen")
    e("buffer_load_ushort v6, v1, s[52:55], s3 offen")
    e("buffer_load_ushort v7, v1, s[56:59], s3 offen")
    e("buffer_load_ushort v8, v2, s[60:63], s4 offen")
    e("s_mov_b32 s5, 0x3fb8aa3b")
    e("s_mov_b32 s6, 0x3e22f983")
    e("s_waitcnt vmcnt(0)")
    for r in (4,5,6,7,8): e(f"v_lshlrev_b32 v{r}, 16, v{r}")
    e("v_mul_f32 v8, s5, v8")
    e("v_exp_f32 v8, v8")
    e("v_mul_f32 v4, s5, v4")
    e("v_exp_f32 v4, v4")
    e("s_nop 1")
    k.bfround(8); k.bfround(4)
    e("v_mul_f32 v10, v4, v8")
    e("v_mul_f32 v11, v5, v8")
    e("v_mul_f32 v12, v6, v8")
    e("v_mul_f32 v13, v7, v8")
    e("v_mul_f32 v10, s5, v10")
    e("v_sub_f32 v10, 0, v10")
    e("v_mul_f32 v11, s6, v11")
    e("v_add_f32 v12, v12, v12")
    e("v_add_f32 v13, v13, v13")
    e("v_sub_f32 v13, 0, v13")
    e("v_lshlrev_b32 v1, 3, v1")
    e("ds_write_b128 v1, v[10:13]")
    e("v_cvt_f32_u32 v20, v0")
    e("v_cmp_gt_u32 vcc, 128, v0")
    e("v_lshlrev_b32 v2, 1, v0")
    e("v_add_u32 v2, 256, v2")
    e("v_lshlrev_b32 v3, 2, v0")
    e("v_cndmask_b32 v2, v3, v2, vcc")
    e("v_cvt_f32_u32 v21, v2")
    e("v_lshlrev_b32 v2, 3, v0")
    e("v_add_u32 v2, 1024, v2")
    e("v_min_u32 v2, 2048, v2") if False else None
    e("v_mov_b32 v3, 2048")
    e("v_min_u32 v2, v2, v3")
    e("v_cvt_f32_u32 v22, v2")
    e("v_mov_b32 v24, 0\nv_mov_b32 v25, 0\nv_mov_b32 v26, 0")
    e("v_mov_b32 v9, 0")
    e("s_waitcnt lgkmcnt(0)")
    e("s_barrier")
    e("s_mov_b32 s7, 0")
    lp = k.newlab("kl")
    k.lab(lp)
    e("ds_read_b128 v[12:15], v9")
    e("v_add_u32 v9, 16, v9")
    e("s_waitcnt lgkmcnt(0)")
    for j in range(3):
        P = 20 + j; A = 24 + j
        t0, t1, t2 = 30 + 4*j, 31 + 4*j, 32 + 4*j
        e(f"v_mul_f32 v{t0}, v12, v{P}")
        e(f"v_mul_f32 v{t1}, v13, v{P}")
        e(f"v_exp_f32 v{t0}, v{t0}")
        e(f"v_fract_f32 v{t1}, v{t1}")
        e(f"v_cos_f32 v{t2}, v{t1}")
        e(f"v_sin_f32 v{t1}, v{t1}")
    e("s_nop 0")
    for j in range(3):
        P = 20 + j; A = 24 + j
        t0, t1, t2 = 30 + 4*j, 31 + 4*j, 32 + 4*j
        e(f"v_mul_f32 v{t2}, v14, v{t2}")
        e(f"v_fma_f32 v{t2}, v15, v{t1}, v{t2}")
        e(f"v_fma_f32 v{A}, v{t0}, v{t2}, v{A}")
    e("s_add_u32 s7, s7, 1")
    e("s_cmp_lt_u32 s7, 128")
    e(f"s_cbranch_scc1 {lp}")
    e("v_lshlrev_b32 v1, 2, v0")
    e("ds_write_b32 v1, v24 offset:4096")
    e("ds_write_b32 v1, v25 offset:5120")
    e("ds_write_b32 v1, v26 offset:6144")
    e("s_waitcnt lgkmcnt(0)")
    e("s_barrier")
    e("v_lshlrev_b32 v1, 3, v0")
    for i in range(8):
        a = 40 + i
        e(f"v_sub_u32 v{a}, {2047 - i}, v1")
        e(f"v_cvt_f32_u32 v2, v{a}")
        e("v_cvt_pk_bf16_f32 v2, v2, v2")
        e("v_and_b32 v2, 0xffff, v2")
        e(f"v_add_u32 v2, {256 - 17280}, v2")
        e(f"v_cmp_gt_u32 vcc, 256, v{a}")
        e("s_nop 1")
        e(f"v_cndmask_b32 v{a}, v2, v{a}, vcc")
        e(f"v_lshlrev_b32 v{a}, 2, v{a}")
    for i in range(8):
        e(f"ds_read_b32 v{40+i}, v{40+i} offset:4096")
    e("s_waitcnt lgkmcnt(0)")
    for i in range(4):
        e(f"v_cvt_pk_bf16_f32 v{48+i}, v{40+2*i}, v{41+2*i}")
    e(f"s_mul_i32 s8, s2, {KRL*2}")
    e("v_lshlrev_b32 v1, 4, v0")
    e("buffer_store_dwordx4 v[48:51], v1, s[64:67], s8 offen")
    e("v_mov_b32 v52, 0\nv_mov_b32 v53, 0\nv_mov_b32 v54, 0\nv_mov_b32 v55, 0")
    e("v_cmp_gt_u32 vcc, 8, v0")
    e("s_and_saveexec_b64 s[10:11], vcc")
    e(f"s_cbranch_execz {L_end}")
    e("s_add_u32 s8, s8, 4096")
    e("buffer_store_dwordx4 v[52:55], v1, s[64:67], s8 offen")
    e(f"s_branch {L_end}")

    k.lab(L_tile)
    lx = k.newlab("tx"); lq = k.newlab("tq"); lo = k.newlab("to"); lgo = k.newlab("tgo")
    e("s_cmp_lt_u32 s2, 800")
    e(f"s_cbranch_scc1 {lx}")
    e("s_cmp_lt_u32 s2, 850")
    e(f"s_cbranch_scc1 {lq}")
    k.lab(lo)
    k.srd(44, 38, 0, 640*1280); k.srd(48, 40, WS_WOT, WOT_BYTES)
    e("s_mov_b32 s12, 1280\ns_sub_u32 s13, s2, 850\ns_mov_b32 s14, 0")
    e(f"s_branch {lgo}")
    k.lab(lq)
    k.srd(44, 32, 0, 640*1280); k.srd(48, 40, WS_WQKVT, WQKVT_BYTES)
    e("s_mov_b32 s12, 1280\ns_sub_u32 s13, s2, 800\ns_mov_b32 s14, 0")
    e(f"s_branch {lgo}")
    k.lab(lx)
    k.srd(44, 16, 0, XT_BYTES); k.srd(48, 40, WS_XT0, XT_BYTES)
    e("s_mov_b32 s12, 4096\ns_sub_u32 s13, s2, 640\ns_mov_b32 s14, 1")
    k.lab(lgo)
    k.srd(52, 40, WS_ST0, ST_BYTES)
    e("s_mul_i32 s3, s13, 52429")
    e("s_lshr_b32 s3, s3, 18")
    e("s_mul_i32 s4, s3, 5")
    e("s_sub_u32 s4, s13, s4")
    e("s_mul_i32 s5, s3, 81920")
    e("s_lshl_b32 s6, s4, 8")
    e("s_add_u32 s5, s5, s6")
    e("s_lshl_b32 s6, s4, 7")
    e("s_mul_i32 s6, s6, s12")
    e("s_lshl_b32 s7, s3, 7")
    e("s_add_u32 s6, s6, s7")
    e("v_lshrrev_b32 v1, 4, v0")
    e("v_and_b32 v2, 15, v0")
    e("v_mul_u32_u24 v3, 1280, v1")
    e("v_lshl_add_u32 v3, v2, 4, v3")
    e("v_mul_u32_u24 v4, 272, v1")
    e("v_lshl_add_u32 v4, v2, 4, v4")
    for i in range(4):
        e(f"s_add_u32 s8, s5, {i*16*1280}")
        e(f"buffer_load_dwordx4 v[{8+4*i}:{11+4*i}], v3, s[44:47], s8 offen")
    e("s_waitcnt vmcnt(0)")
    for i in range(4):
        e(f"ds_write_b128 v4, v[{8+4*i}:{11+4*i}] offset:{i*16*272}")
    lns = k.newlab("nostat")
    e("s_cmp_eq_u32 s14, 0")
    e(f"s_cbranch_scc1 {lns}")
    for i in range(4):
        for j in range(4):
            e(f"v_lshlrev_b32 v{32+2*j}, 16, v{8+4*i+j}")
            e(f"v_and_b32 v{33+2*j}, 0xffff0000, v{8+4*i+j}")
        e("v_add_f32 v40, v32, v33")
        for j in range(2, 8): e(f"v_add_f32 v40, v40, v{32+j}")
        for sh in (8, 4, 2, 1):
            e("s_nop 1")
            e(f"v_add_f32_dpp v40, v40, v40 row_ror:{sh} row_mask:0xf bank_mask:0xf")
        e("v_mul_f32 v41, 0x3c000000, v40")
        for j in range(8): e(f"v_sub_f32 v{32+j}, v{32+j}, v41")
        e("v_mul_f32 v42, v32, v32")
        for j in range(1, 8): e(f"v_fma_f32 v42, v{32+j}, v{32+j}, v42")
        for sh in (8, 4, 2, 1):
            e("s_nop 1")
            e(f"v_add_f32_dpp v42, v42, v42 row_ror:{sh} row_mask:0xf bank_mask:0xf")
        e(f"v_mov_b32 v{44+2*i}, v40")
        e(f"v_mov_b32 v{45+2*i}, v42")
    e("s_mul_i32 s8, s4, 16384")
    e("s_lshl_b32 s9, s3, 9")
    e("s_add_u32 s8, s8, s9")
    e("v_lshlrev_b32 v5, 3, v1")
    e("v_cmp_eq_u32 vcc, 0, v2")
    e("s_and_saveexec_b64 s[10:11], vcc")
    for i in range(4):
        e(f"buffer_store_dwordx2 v[{44+2*i}:{45+2*i}], v5, s[52:55], s8 offen offset:{i*128}")
    e("s_mov_b64 exec, s[10:11]")
    k.lab(lns)
    e("s_waitcnt lgkmcnt(0)")
    e("s_barrier")
    e("v_lshrrev_b32 v1, 6, v0")
    e("v_bfe_u32 v2, v0, 4, 2")
    e("v_and_b32 v3, 15, v0")
    e("v_lshrrev_b32 v4, 2, v3")
    e("v_and_b32 v5, 3, v3")
    e("v_lshl_add_u32 v6, v1, 4, v4")
    e("v_mul_u32_u24 v6, 272, v6")
    e("v_lshlrev_b32 v7, 5, v2")
    e("v_lshl_add_u32 v7, v5, 3, v7")
    e("v_add_u32 v6, v6, v7")
    for it in range(4):
        off = (it & 1) * 8 * 272 + (it >> 1) * 128
        e(f"ds_read_b64_tr_b16 v[{8+4*it}:{9+4*it}], v6 offset:{off}")
        e(f"ds_read_b64_tr_b16 v[{10+4*it}:{11+4*it}], v6 offset:{off + 4*272}")
    e("v_lshl_add_u32 v7, v2, 4, v3")
    e("v_mul_lo_u32 v7, v7, s12")
    e("v_lshl_add_u32 v7, v1, 5, v7")
    e("s_lshl_b32 s9, s12, 6")
    e("s_add_u32 s9, s9, s6")
    e("s_waitcnt lgkmcnt(0)")
    for it in range(4):
        so = "s6" if (it >> 1) == 0 else "s9"
        e(f"buffer_store_dwordx4 v[{8+4*it}:{11+4*it}], v7, s[48:51], {so} offen offset:{(it&1)*16}")
    e(f"s_branch {L_end}")

    k.lab(L_kv)
    k.srd(44, 34, 0, 640*40); k.srd(48, 36, 0, 640*40); k.srd(52, 40, WS_WQKVT, WQKVT_BYTES)
    for it in range(3):
        lskip = k.newlab("kvs")
        e(f"v_add_u32 v1, {256*it}, v0")
        e("v_cmp_gt_u32 vcc, 640, v1")
        e("s_and_saveexec_b64 s[10:11], vcc")
        e(f"s_cbranch_execz {lskip}")
        e("v_mul_u32_u24 v2, 40, v1")
        e("v_lshlrev_b32 v3, 1, v1")
        for c in range(20):
            e(f"buffer_load_ushort v{10+c}, v2, s[44:47], 0 offen offset:{2*c}")
            e(f"buffer_load_ushort v{30+c}, v2, s[48:51], 0 offen offset:{2*c}")
        e("v_mov_b32 v4, 0")
        e("s_waitcnt vmcnt(0)")
        for row in range(64):
            if row < 20: src = 10 + row
            elif 32 <= row < 52: src = 30 + row - 32
            else: src = 4
            e(f"s_mov_b32 s8, {(640+row)*1280}")
            e(f"buffer_store_short v{src}, v3, s[52:55], s8 offen")
        k.lab(lskip)
        e("s_mov_b64 exec, s[10:11]")
    k.lab(L_end)
    e("s_endpgm")
    return k
```

```python
from gen_common import *
Q_T = 0; Q_R = 40960; QKV_LDS = 40960 + 4096
QSCALE = 0x3ea52a2a
import struct
def f2u(x): return struct.unpack("<I", struct.pack("<f", x))[0]
QSCALE = f2u(20 ** -0.5 * 1.4426950408889634)

def gen_qkv(name, ws_xin):
    k = K(name); e = k.e
    k.lab(name)
    lend = name + "_end"
    e("s_cmp_ge_u32 s2, 384")
    e(f"s_cbranch_scc1 {lend}")
    e("s_load_dwordx2 s[6:7], s[0:1], 112")
    e("s_waitcnt lgkmcnt(0)")
    k.srd(8, 6, ws_xin, XT_BYTES)
    k.srd(12, 6, WS_WQKVT, WQKVT_BYTES)
    k.srd(16, 6, WS_Q, Q_BYTES)
    k.srd(20, 6, WS_KV, KV_BYTES)
    e("s_mul_i32 s3, s2, 43691")
    e("s_lshr_b32 s3, s3, 18")
    e("s_mul_i32 s4, s3, 6")
    e("s_sub_u32 s4, s2, s4")
    e("v_lshrrev_b32 v1, 6, v0")
    e("s_nop 0")
    e("v_readfirstlane_b32 s5, v1")
    e("s_lshl_b32 s24, s4, 2")
    e("s_add_u32 s24, s24, s5")
    e("v_and_b32 v2, 31, v0")
    e("v_bfe_u32 v3, v0, 5, 1")
    e("v_mul_u32_u24 v4, 1280, v2")
    e("v_lshl_add_u32 v4, v3, 4, v4")
    e("s_mul_i32 s25, s24, 40960")
    AB = 96
    for s in range(40):
        e(f"buffer_load_dwordx4 v[{AB+4*s}:{AB+4*s+3}], v4, s[12:15], s25 offen offset:{32*s}")
    e("v_and_b32 v5, 3, v0")
    e("v_lshrrev_b32 v6, 2, v0")
    e("v_lshlrev_b32 v7, 12, v6")
    e("v_lshl_add_u32 v7, v5, 4, v7")
    e("s_lshl_b32 s26, s3, 6")
    XB = 8
    for i in range(10):
        e(f"s_add_u32 s27, s26, {i*64*4096}")
        e(f"buffer_load_dwordx4 v[{XB+4*i}:{XB+4*i+3}], v7, s[8:11], s27 offen")
    e("s_waitcnt vmcnt(0)")
    def unpack(i, j, which, dst):
        src = XB + 4*i + j
        if which == 0: e(f"v_lshlrev_b32 v{dst}, 16, v{src}")
        else: e(f"v_and_b32 v{dst}, 0xffff0000, v{src}")
    for p in range(8): e(f"v_mov_b32 v{48+p}, 0")
    for i in range(10):
        for j in range(4):
            for wch in range(2):
                unpack(i, j, wch, 64)
                e(f"v_add_f32 v{48+2*j+wch}, v{48+2*j+wch}, v64")
    def reduce8(base, outbase):
        for sh in (4, 8):
            for p in range(8):
                e("s_nop 1") if p == 0 else None
                e(f"v_add_f32_dpp v{base+p}, v{base+p}, v{base+p} row_ror:{sh} row_mask:0xf bank_mask:0xf")
        e("v_lshrrev_b32 v65, 4, v0")
        e("v_lshlrev_b32 v65, 7, v65")
        e("v_lshl_add_u32 v65, v5, 5, v65")
        e(f"ds_write_b128 v65, v[{base}:{base+3}] offset:{Q_R}")
        e(f"ds_write_b128 v65, v[{base+4}:{base+7}] offset:{Q_R+16}")
        e("s_waitcnt lgkmcnt(0)")
        e("s_barrier")
        e("v_lshlrev_b32 v65, 5, v5")
        for p in range(8): e(f"v_mov_b32 v{outbase+p}, 0")
        for r16 in range(16):
            e(f"ds_read_b128 v[68:71], v65 offset:{Q_R + r16*128}")
            e(f"ds_read_b128 v[72:75], v65 offset:{Q_R + r16*128 + 16}")
            e("s_waitcnt lgkmcnt(0)")
            for p in range(8): e(f"v_add_f32 v{outbase+p}, v{outbase+p}, v{68+p}")
        e("s_barrier")
    reduce8(48, 56)
    e("s_mov_b32 s34, 0x3acccccd")
    e("s_mov_b32 s37, 0x3727c5ac")
    for p in range(8): e(f"v_mul_f32 v{56+p}, s34, v{56+p}")
    for p in range(8): e(f"v_mov_b32 v{48+p}, 0")
    for i in range(10):
        for j in range(4):
            for wch in range(2):
                p = 2*j + wch
                unpack(i, j, wch, 64)
                e(f"v_sub_f32 v64, v64, v{56+p}")
                e(f"v_fma_f32 v{48+p}, v64, v64, v{48+p}")
    reduce8(48, 76)
    for p in range(8):
        e(f"v_mul_f32 v{76+p}, s34, v{76+p}")
        k.bfround(76+p); k.bfround(56+p)
        e(f"v_add_f32 v{76+p}, s37, v{76+p}")
        k.bfround(76+p)
        e(f"v_sqrt_f32 v{76+p}, v{76+p}")
        e("s_nop 0")
        k.bfround(76+p)
        e(f"v_rcp_f32 v{76+p}, v{76+p}")
    e("v_lshlrev_b32 v65, 6, v6")
    e("v_lshl_add_u32 v65, v5, 4, v65")
    for i in range(10):
        for j in range(4):
            for wch in range(2):
                p = 2*j + wch
                unpack(i, j, wch, 84+wch)
                e(f"v_sub_f32 v{84+wch}, v{84+wch}, v{56+p}")
                k.bfround(84+wch)
                e(f"v_mul_f32 v{84+wch}, v{84+wch}, v{76+p}")
            e(f"v_cvt_pk_bf16_f32 v{88+j}, v84, v85")
        e(f"ds_write_b128 v65, v[88:91] offset:{Q_T + i*4096}")
    e("s_waitcnt lgkmcnt(0)")
    e("s_barrier")
    e("s_cmp_ge_u32 s24, 22")
    e(f"s_cbranch_scc1 {lend}")
    e("v_and_b32 v1, 63, v0")
    e("v_bfe_u32 v5, v1, 2, 2")
    e("v_lshl_add_u32 v5, v3, 3, v5")
    e("v_lshlrev_b32 v5, 6, v5")
    e("v_bfe_u32 v6, v1, 4, 1")
    e("v_lshl_add_u32 v5, v6, 5, v5")
    e("v_and_b32 v6, 3, v1")
    e("v_lshl_add_u32 v5, v6, 3, v5")
    for r in range(16): e(f"v_mov_b32 v{48+r}, 0")
    def bl(s, sb):
        b = 8 + 4*sb
        e(f"ds_read_b64_tr_b16 v[{b}:{b+1}], v5 offset:{s*1024}")
        e(f"ds_read_b64_tr_b16 v[{b+2}:{b+3}], v5 offset:{s*1024 + 256}")
    NB = 4
    for s in range(NB-1): bl(s, s % NB)
    for s in range(40):
        if s + NB - 1 < 40:
            bl(s + NB - 1, (s + NB - 1) % NB)
            e(f"s_waitcnt lgkmcnt({2*(NB-1)})")
        else:
            e(f"s_waitcnt lgkmcnt({2*(39-s)})")
        b = 8 + 4*(s % NB)
        e(f"v_mfma_f32_32x32x16_bf16 v[48:63], v[{AB+4*s}:{AB+4*s+3}], v[{b}:{b+3}], v[48:63]")
    e("s_nop 15\ns_nop 3")
    lk = k.newlab("ek"); lv = k.newlab("ev")
    e("s_cmp_eq_u32 s24, 20")
    e(f"s_cbranch_scc1 {lk}")
    e("s_cmp_eq_u32 s24, 21")
    e(f"s_cbranch_scc1 {lv}")
    e(f"s_mov_b32 s30, {QSCALE:#x}")
    for r in range(16): e(f"v_mul_f32 v{48+r}, s30, v{48+r}")
    for j in range(8): e(f"v_cvt_pk_bf16_f32 v{64+j}, v{48+2*j}, v{49+2*j}")
    e("v_mul_u32_u24 v4, 1280, v2")
    e("v_lshl_add_u32 v4, v3, 3, v4")
    e("s_mul_i32 s28, s3, 40960")
    e("s_lshl_b32 s29, s24, 6")
    e("s_add_u32 s28, s28, s29")
    for g in range(4):
        e(f"buffer_store_dwordx2 v[{64+2*g}:{65+2*g}], v4, s[16:19], s28 offen offset:{16*g}")
    e(f"s_branch {lend}")
    k.lab(lk)
    for j in range(8): e(f"v_cvt_pk_bf16_f32 v{64+j}, v{48+2*j}, v{49+2*j}")
    e("v_lshlrev_b32 v4, 4, v2")
    e("v_lshl_add_u32 v4, v3, 3, v4")
    e("s_lshl_b32 s28, s3, 10")
    e("buffer_store_dwordx2 v[64:65], v4, s[20:23], s28 offen offset:0")
    e("buffer_store_dwordx2 v[66:67], v4, s[20:23], s28 offen offset:512")
    e("v_lshlrev_b32 v4, 3, v2")
    e("s_lshl_b32 s28, s3, 8")
    e("s_add_u32 s28, s28, 65536")
    e("v_cmp_eq_u32 vcc, 0, v3")
    e("s_and_saveexec_b64 s[32:33], vcc")
    e("buffer_store_dwordx2 v[68:69], v4, s[20:23], s28 offen")
    e(f"s_branch {lend}")
    k.lab(lv)
    for r in range(12):
        e(f"v_cvt_pk_bf16_f32 v{48+r}, v{48+r}, v{48+r}")
    e("v_lshrrev_b32 v4, 4, v2")
    e("v_mul_u32_u24 v4, 640, v4")
    e("v_bfe_u32 v5, v2, 2, 1")
    e("v_mul_u32_u24 v5, 320, v5")
    e("v_add_u32 v4, v4, v5")
    e("v_bfe_u32 v5, v2, 3, 1")
    e("v_lshl_add_u32 v4, v5, 3, v4")
    e("v_and_b32 v5, 3, v2")
    e("v_lshl_add_u32 v4, v5, 1, v4")
    e("v_lshl_add_u32 v4, v3, 6, v4")
    e("s_mul_i32 s28, s3, 1280")
    e("s_add_u32 s28, s28, 81920")
    for r in range(8):
        e(f"buffer_store_short v{48+r}, v4, s[20:23], s28 offen offset:{(8*(r>>2) + (r&3))*16}")
    e("v_cmp_eq_u32 vcc, 0, v3")
    e("s_and_saveexec_b64 s[32:33], vcc")
    for r in range(8, 12):
        e(f"buffer_store_short v{48+r}, v4, s[20:23], s28 offen offset:{(8*(r>>2) + (r&3))*16}")
    k.lab(lend)
    e("s_endpgm")
    return k
```

```python
from gen_common import *
from gen_conv import gen_conv, CONV_LDS
from gen_qkv import gen_qkv, QKV_LDS
from gen_attn import gen_attn, ATT_LDS
from gen_oproj import gen_oproj, OPR_LDS
def kernels():
    ks = []
    att = gen_attn("attn_kernel")
    ks.append((gen_conv("conv1_kernel", WS_XT0, WS_XT1, WS_ST0), 160, 640, 256, CONV_LDS))
    ks.append((gen_qkv("qkv1_kernel", WS_XT1), 256, 384, 256, QKV_LDS))
    ks.append((att, 208, 256, 512, ATT_LDS))
    ks.append((gen_oproj("oproj1_kernel", WS_XT1, WS_XT2, WS_ST1, False), 176, 320, 256, OPR_LDS))
    ks.append((gen_conv("conv2_kernel", WS_XT2, WS_XT3, WS_ST1), 160, 640, 256, CONV_LDS))
    ks.append((gen_qkv("qkv2_kernel", WS_XT3), 256, 384, 256, QKV_LDS))
    ks.append((att, 208, 256, 512, ATT_LDS))
    ks.append((gen_oproj("oproj2_kernel", WS_XT3, None, None, True), 176, 320, 256, OPR_LDS))
    return ks
```

```python
import sys
from gen_common import *
from gen_prep import gen_prep, PREP_GRID, PREP_LDS
def build(stages=None):
    kernels = []
    kernels.append((gen_prep(), 120, PREP_GRID, 256, PREP_LDS))
    try:
        import gen_rest
        kernels += gen_rest.kernels()
    except ImportError:
        pass
    hdr = []
    seen = {}
    body = []
    for k, vg, grid, block, lds in kernels:
        hdr.append(f"; @launch kernel={k.name} grid=({grid},1,1) block=({block},1,1) lds={lds}")
        if k.name not in seen:
            seen[k.name] = (k, vg)
    out = ["; generated by work/gen.py - multi-kernel pipeline: prep, conv, qkv, attn, oproj"] + hdr
    out.append('.amdgcn_target "amdgcn-amd-amdhsa--gfx950"')
    out.append(".text")
    for name, (k, vg) in seen.items():
        out.append(f".globl {name}\n.p2align 8\n.type {name},@function")
        out.append(k.text())
    out.append('.section .rodata,"a"')
    for name, (k, vg) in seen.items():
        out.append(".p2align 6")
        out.append(descriptor(name, 256 if STAMP else vg))
    return "\n".join(out) + "\n"
if __name__ == "__main__":
    dst = sys.argv[1] if len(sys.argv) > 1 else "interleave_layers__ssm_conv_s4d__grouped_kv_mqa__prompt.s"
    open(dst, "w").write(build())
    print("wrote", dst)
```

```python
from gen_common import *
ATT_LDS = 163840

def gen_attn(name):
    k = K(name); e = k.e
    k.lab(name)
    lend = name + "_end"
    e("s_cmp_ge_u32 s2, 256")
    e(f"s_cbranch_scc1 {lend}")
    k.stamp_init(); k.stamp(0, 100)
    e("s_load_dwordx2 s[6:7], s[0:1], 112")
    e("s_waitcnt lgkmcnt(0)")
    k.srd(8, 6, WS_KV, KV_BYTES)
    k.srd(12, 6, WS_Q, Q_BYTES)
    k.srd(16, 6, WS_O, Q_BYTES)
    e("v_lshlrev_b32 v1, 4, v0")
    for i in range(20):
        e(f"s_mov_b32 s20, {i*8192}")
        e(f"buffer_load_dwordx4 v[{128+4*i}:{131+4*i}], v1, s[8:11], s20 offen")
    e("v_lshrrev_b32 v2, 6, v0")
    e("s_nop 0")
    e("v_readfirstlane_b32 s3, v2")
    e("s_lshl_b32 s4, s2, 3")
    e("s_add_u32 s4, s4, s3")
    e("s_mul_i32 s5, s4, 1280")
    e("v_and_b32 v3, 31, v0")
    e("v_bfe_u32 v4, v0, 5, 1")
    e("v_mul_u32_u24 v5, 40, v3")
    e("v_lshl_add_u32 v6, v4, 4, v5")
    e("buffer_load_dwordx4 v[8:11], v6, s[12:15], s5 offen")
    e("buffer_load_dwordx2 v[12:13], v5, s[12:15], s5 offen offset:32")
    e("v_add_u32 v88, 0x10000, v1")
    e("v_add_u32 v89, 0x20000, v1")
    for i in range(20):
        e(f"s_waitcnt vmcnt({21 - i})")
        ar = (1, 88, 89)[i // 8]
        e(f"ds_write_b128 v{ar}, v[{128+4*i}:{131+4*i}] offset:{(i%8)*8192}")
    e("s_waitcnt vmcnt(0)")
    e("v_cmp_eq_u32 vcc, 0, v4")
    e("v_mov_b32 v14, 0\nv_mov_b32 v15, 0")
    e("v_cndmask_b32 v12, 0, v12, vcc")
    e("v_cndmask_b32 v13, 0, v13, vcc")
    for b in (20, 28): e(f"v_mov_b32 v{b+2}, 0\nv_mov_b32 v{b+3}, 0")
    e("v_cmp_eq_u32 vcc, 20, v3")
    e("v_mov_b32 v7, 0x3f803f80")
    for r in range(32, 48): e(f"v_cndmask_b32 v{r}, 0, v7, vcc")
    for r in range(16): e(f"v_mov_b32 v{96+r}, 0\nv_mov_b32 v{112+r}, 0")
    e("v_and_b32 v88, 63, v0")
    e("v_lshlrev_b32 v88, 4, v88")
    e("v_lshlrev_b32 v89, 3, v3")
    e("v_add_u32 v89, 0x10000, v89")
    e("v_mul_u32_u24 v90, 320, v4")
    e("v_lshl_add_u32 v90, v3, 4, v90")
    e("v_add_u32 v90, 0x14000, v90")
    e("s_mov_b32 s22, 0x000fffff")
    e("s_mov_b32 s23, 0x000fffff")
    e("s_mov_b32 s24, 0x41000000")
    e("s_waitcnt lgkmcnt(0)")
    k.stamp(1, 100)
    e("s_barrier")
    k.stamp(2, 100)
    KB = (16, 24); VB = (32, 40); SB = (48, 64)
    def ldK(tile_off, kb):
        e(f"ds_read_b128 v[{kb}:{kb+3}], v88 offset:{tile_off*1024}")
        e(f"ds_read_b64 v[{kb+4}:{kb+5}], v89 offset:{tile_off*256}")
    def ldV(tile_off, vb):
        e("s_mov_b64 exec, s[22:23]")
        e(f"ds_read_b128 v[{vb}:{vb+3}], v90 offset:{tile_off*1280}")
        e(f"ds_read_b128 v[{vb+4}:{vb+7}], v90 offset:{tile_off*1280+640}")
        e("s_mov_b64 exec, -1")
    def smfma(kb, sb):
        e(f"v_mfma_f32_32x32x16_bf16 v[{sb}:{sb+15}], v[{kb}:{kb+3}], v[8:11], v[112:127]")
        e(f"v_mfma_f32_32x32x16_bf16 v[{sb}:{sb+15}], v[{kb+4}:{kb+7}], v[12:15], v[{sb}:{sb+15}]")
    def maxtree(sb, dst):
        e(f"v_max3_f32 v{dst}, v{sb}, v{sb+1}, v{sb+2}")
        for j in range(3, 15, 2): e(f"v_max3_f32 v{dst}, v{dst}, v{sb+j}, v{sb+j+1}")
        e(f"v_max_f32 v{dst}, v{dst}, v{sb+15}")
    def crosshalf_max(a, b):
        e(f"v_mov_b32 v{b}, v{a}")
        e("s_nop 1")
        e(f"v_permlane32_swap_b32 v{a}, v{b}")
        e("s_nop 1")
        e(f"v_max_f32 v{a}, v{a}, v{b}")
    ldK(0, KB[0]); ldV(0, VB[0]); ldK(1, KB[1])
    e("s_waitcnt lgkmcnt(4)")
    smfma(KB[0], SB[0])
    e("s_nop 15\ns_nop 3")
    maxtree(SB[0], 92)
    crosshalf_max(92, 93)
    for r in range(16):
        e(f"v_sub_f32 v{SB[0]+r}, v{SB[0]+r}, v92")
        e(f"v_sub_f32 v{112+r}, 0, v92")
    k.stamp(3, 100)
    e("s_mov_b32 s25, 0")
    lptop = k.newlab("loop")
    rare = []
    k.lab(lptop)
    for half in range(2):
        sX = SB[half]; sY = SB[half ^ 1]
        kbn = KB[half ^ 1]
        kbl = KB[half]
        vbc = VB[half]; vbn = VB[half ^ 1]
        e("s_waitcnt lgkmcnt(2)")
        smfma(kbn, sY)
        ldK(half + 2, kbl)
        ldV(half + 1, vbn)
        maxtree(sX, 92)
        lr = k.newlab("rare"); lb = k.newlab("back")
        e("v_cmp_lt_f32 vcc, s24, v92")
        e(f"s_cbranch_vccnz {lr}")
        k.lab(lb)
        rare.append((lr, lb, sX, sY))
        for r in range(16): e(f"v_exp_f32 v{sX+r}, v{sX+r}")
        e("s_nop 0")
        for j in range(8): e(f"v_cvt_pk_bf16_f32 v{80+j}, v{sX+2*j}, v{sX+2*j+1}")
        e("s_waitcnt lgkmcnt(4)")
        e("s_nop 0")
        e(f"v_mfma_f32_32x32x16_bf16 v[96:111], v[{vbc}:{vbc+3}], v[80:83], v[96:111]")
        e(f"v_mfma_f32_32x32x16_bf16 v[96:111], v[{vbc+4}:{vbc+7}], v[84:87], v[96:111]")
    e("v_add_u32 v88, 2048, v88")
    e("v_add_u32 v89, 512, v89")
    e("v_add_u32 v90, 2560, v90")
    e("s_add_u32 s25, s25, 1")
    e("s_cmp_lt_u32 s25, 32")
    e(f"s_cbranch_scc1 {lptop}")
    k.stamp(4, 100)
    e("s_waitcnt lgkmcnt(0)")
    e("s_nop 15\ns_nop 3")
    e("v_mov_b32 v92, v104")
    e("v_mov_b32 v93, v104")
    e("s_nop 1")
    e("v_permlane32_swap_b32 v92, v93")
    e("s_nop 1")
    e("v_rcp_f32 v93, v93")
    e("s_nop 0")
    for r in range(12): e(f"v_mul_f32 v{96+r}, v{96+r}, v93")
    for j in range(6): e(f"v_cvt_pk_bf16_f32 v{80+j}, v{96+2*j}, v{97+2*j}")
    e("s_lshr_b32 s26, s4, 5")
    e("s_mul_i32 s26, s26, 40960")
    e("s_and_b32 s27, s4, 31")
    e("s_lshl_b32 s27, s27, 4")
    e("s_add_u32 s26, s26, s27")
    e("v_mul_u32_u24 v6, 20, v3")
    e("v_lshl_add_u32 v6, v4, 2, v6")
    for g in range(3):
        if g: e("v_add_u32 v6, 8, v6")
        e("v_lshrrev_b32 v7, 3, v6")
        e("v_lshlrev_b32 v7, 9, v7")
        e("v_and_b32 v5, 7, v6")
        e("v_lshl_add_u32 v7, v5, 1, v7")
        if g == 2:
            e("v_cmp_eq_u32 vcc, 0, v4")
            e("s_and_saveexec_b64 s[28:29], vcc")
        e(f"buffer_store_dwordx2 v[{80+2*g}:{81+2*g}], v7, s[16:19], s26 offen")
    e("s_endpgm")
    for (lr, lb, sX, sY) in rare:
        k.lab(lr)
        e("s_nop 15\ns_nop 15")
        e("v_max_f32 v92, 0, v92")
        crosshalf_max(92, 93)
        e("v_sub_f32 v94, 0, v92")
        e("v_exp_f32 v94, v94")
        e("v_sub_f32 v112, v112, v92")
        for r in range(1, 16): e(f"v_mov_b32 v{112+r}, v112")
        for r in range(16):
            e(f"v_sub_f32 v{sX+r}, v{sX+r}, v92")
            e(f"v_sub_f32 v{sY+r}, v{sY+r}, v92")
            e(f"v_mul_f32 v{96+r}, v{96+r}, v94")
        e("s_nop 3")
        e(f"s_branch {lb}")
    k.lab(lend)
    e("s_endpgm")
    return k
```

```python
import os
STAMP = bool(os.environ.get('STAMP'))
L = 2048; D = 640; NST = 128
WS_XT0 = 0x0
WS_XT1 = 0x280000
WS_XT2 = 0x500000
WS_XT3 = 0x780000
XT_BYTES = D * L * 2
WS_KR = 0xA00000; KRL = 2112; KR_BYTES = D * KRL * 2
WS_WQKVT = 0xD00000; WQKVT_BYTES = 704 * 1280
WS_WOT = 0xE00000; WOT_BYTES = 640 * 1280
WS_Q = 0xF00000; Q_BYTES = L * D * 2
WS_O = 0x1180000
WS_KV = 0x1400000; KV_BYTES = 163840
WS_STF0 = 0x1430000; STF_BYTES = L * 8
WS_STF1 = 0x1438000
WS_STP = 0x1440000; STP_BYTES = 10 * L * 8
WS_UF = 0x1500000
WS_END = 0x1780000

class K:
    def __init__(self, name):
        self.name = name; self.t = []; self.nlab = 0
    def e(self, s):
        for ln in s.strip().split("\n"):
            ln = ln.strip()
            if ln: self.t.append("    " + ln)
    def lab(self, l): self.t.append(l + ":")
    def newlab(self, p="L"):
        self.nlab += 1; return f"{self.name}_{p}{self.nlab}"
    def text(self): return "\n".join(self.t)
    def ldarg(self, sreg, slot): self.e(f"s_load_dwordx2 s[{sreg}:{sreg+1}], s[0:1], {slot*8}")
    def srd(self, s, base, off, size):
        if off:
            self.e(f"s_add_u32 s{s}, s{base}, {off:#x}")
            self.e(f"s_addc_u32 s{s+1}, s{base+1}, 0")
        else:
            self.e(f"s_mov_b32 s{s}, s{base}")
            self.e(f"s_mov_b32 s{s+1}, s{base+1}")
        self.e(f"s_mov_b32 s{s+2}, {size:#x}")
        self.e(f"s_mov_b32 s{s+3}, 0x00020000")
    def stamp_init(self):
        if not STAMP: return
        self.e("s_load_dwordx2 s[92:93], s[0:1], 104")
        self.e("s_waitcnt lgkmcnt(0)")
        self.e("s_mov_b32 s94, 256\ns_mov_b32 s95, 0x00020000")
    def stamp(self, i, wg=0):
        if not STAMP: return
        l = self.newlab("st")
        self.e(f"s_cmp_lg_u32 s2, {wg}")
        self.e(f"s_cbranch_scc1 {l}")
        self.e("s_memtime s[90:91]")
        self.e("s_waitcnt lgkmcnt(0)")
        self.e("v_mov_b32 v255, s90")
        self.e("v_lshrrev_b32 v254, 6, v0")
        self.e("v_lshlrev_b32 v254, 5, v254")
        self.e(f"buffer_store_dword v255, v254, s[92:95], 0 offen offset:{4*i}")
        self.lab(l)
    def bfround(self, v, tmp=None):
        self.e(f"v_cvt_pk_bf16_f32 v{v}, v{v}, v{v}")
        self.e(f"v_lshlrev_b32 v{v}, 16, v{v}")

def descriptor(name, vgpr, sgpr=96):
    acc = (vgpr + 3) // 4 * 4
    return f""".amdhsa_kernel {name}
  .amdhsa_next_free_vgpr {vgpr}
  .amdhsa_next_free_sgpr {sgpr}
  .amdhsa_accum_offset {acc}
  .amdhsa_group_segment_fixed_size 0
  .amdhsa_kernarg_size 120
  .amdhsa_user_sgpr_count 2
  .amdhsa_user_sgpr_kernarg_segment_ptr 1
  .amdhsa_system_sgpr_workgroup_id_x 1
  .amdhsa_float_denorm_mode_32 3
.end_amdhsa_kernel
"""
```

```python
from gen_common import *

CSTR = 4416
C_KR = 0
C_P = 0
C_U = 35328
CONV_LDS = 42944

def gen_conv(name, ws_xin, ws_xout, ws_stf):
    k = K(name); e = k.e
    k.lab(name)
    lend = name + "_end"
    e("s_cmp_ge_u32 s2, 640")
    e(f"s_cbranch_scc1 {lend}")
    k.stamp_init(); k.stamp(0, 300)
    e("s_load_dwordx2 s[4:5], s[0:1], 48")
    e("s_load_dwordx2 s[6:7], s[0:1], 112")
    e("s_waitcnt lgkmcnt(0)")
    k.srd(8, 6, ws_xin, XT_BYTES)
    k.srd(12, 6, ws_xout, XT_BYTES)
    k.srd(16, 6, ws_stf, L*8)
    k.srd(20, 6, WS_KR, KR_BYTES)
    k.srd(24, 4, 0, 1280)
    e("s_lshl_b32 s28, s2, 12")
    e(f"s_mul_i32 s29, s2, {KRL*2}")
    e("s_lshl_b32 s30, s2, 1")
    e("v_lshlrev_b32 v1, 4, v0")
    e("v_lshlrev_b32 v2, 6, v0")
    e("v_mov_b32 v3, 0")
    e("buffer_load_dwordx4 v[32:35], v1, s[20:23], s29 offen")
    e("buffer_load_dwordx4 v[36:39], v1, s[20:23], s29 offen offset:16")
    e("buffer_load_dwordx4 v[4:7], v1, s[8:11], s28 offen")
    for q in range(4):
        e(f"buffer_load_dwordx4 v[{96+4*q}:{99+4*q}], v2, s[16:19], 0 offen offset:{16*q}")
    e("buffer_load_ushort v13, v3, s[24:27], s30 offen")
    e("v_mov_b32 v20, 0\nv_mov_b32 v21, 0\nv_mov_b32 v22, 0\nv_mov_b32 v23, 0")
    e("v_cmp_gt_u32 vcc, 155, v0")
    e("s_and_saveexec_b64 s[32:33], vcc")
    e(f"ds_write_b128 v1, v[20:23] offset:{C_U}")
    e("s_mov_b64 exec, s[32:33]")
    e("v_lshrrev_b32 v8, 2, v0")
    e(f"v_mul_u32_u24 v8, {CSTR}, v8")
    e("v_and_b32 v9, 3, v0")
    e("v_lshl_add_u32 v8, v9, 4, v8")
    e("v_cmp_gt_u32 vcc, 32, v0")
    e("s_and_saveexec_b64 s[32:33], vcc")
    e("ds_write_b128 v8, v[20:23] offset:4096")
    e("s_mov_b64 exec, s[32:33]")
    e("s_waitcnt vmcnt(6)")
    for j in range(1, 8): e(f"v_mov_b32 v{39+j}, v{32+j}")
    for j in range(7): e(f"v_alignbit_b32 v{48+j}, v{33+j}, v{32+j}, 16")
    for j in range(1, 7): e(f"v_mov_b32 v{55+j}, v{48+j}")
    for c in range(8):
        ee = c >> 1
        if c & 1 == 0: b = (32 + ee) if ee % 2 == 0 else (40 + ee - 1)
        else: b = (48 + ee) if ee % 2 == 0 else (56 + ee - 1)
        e(f"ds_write_b128 v1, v[{b}:{b+3}] offset:{C_KR + c*CSTR}")
    e("s_waitcnt vmcnt(0)")
    k.stamp(1, 300)
    for j in range(4):
        e(f"v_lshlrev_b32 v{112+2*j}, 16, v{4+j}")
        e(f"v_and_b32 v{113+2*j}, 0xffff0000, v{4+j}")
    for p in range(8):
        e(f"v_sub_f32 v{120+p}, v{112+p}, v{96+2*p}")
        k.bfround(120+p)
        e(f"v_mul_f32 v{120+p}, v{120+p}, v{97+2*p}")
    for j in range(4):
        e(f"v_cvt_pk_bf16_f32 v{24+j}, v{120+2*j}, v{121+2*j}")
    e("v_lshrrev_b32 v28, 2, v0")
    e("v_mul_u32_u24 v28, 80, v28")
    e("v_and_b32 v29, 3, v0")
    e("v_lshl_add_u32 v28, v29, 4, v28")
    e(f"ds_write_b128 v28, v[24:27] offset:{C_U + 31*80}")
    for j in range(4):
        e(f"v_lshlrev_b32 v{120+2*j}, 16, v{24+j}")
        e(f"v_and_b32 v{121+2*j}, 0xffff0000, v{24+j}")
    e("v_lshlrev_b32 v13, 16, v13")
    e("v_lshrrev_b32 v30, 6, v0")
    e("s_nop 0")
    e("v_readfirstlane_b32 s40, v30")
    e("v_and_b32 v31, 31, v0")
    e("v_bfe_u32 v14, v0, 5, 1")
    e("v_lshlrev_b32 v15, 10, v30")
    e(f"v_sub_u32 v15, {2*(2047 - 32*15 - 7)}, v15")
    e("v_lshrrev_b32 v28, 3, v31")
    e("v_lshlrev_b32 v28, 4, v28")
    e("v_sub_u32 v15, v15, v28")
    e("v_lshl_add_u32 v15, v14, 4, v15")
    e("v_sub_u32 v28, 7, v31")
    e("v_and_b32 v28, 7, v28")
    e(f"v_mul_u32_u24 v28, {CSTR}, v28")
    e("v_add_u32 v15, v15, v28")
    e("v_lshlrev_b32 v28, 4, v30")
    e("v_sub_u32 v28, v31, v28")
    e("v_add_u32 v28, 48, v28")
    e("v_mul_u32_u24 v28, 80, v28")
    e("v_lshl_add_u32 v28, v14, 4, v28")
    e(f"v_add_u32 v28, {C_U}, v28")
    for r in range(32): e(f"v_mov_b32 v{128+r}, 0")
    e("s_waitcnt lgkmcnt(0)")
    k.stamp(2, 300)
    e("s_barrier")
    k.stamp(3, 300)
    lhi = k.newlab("hi"); ljoin = k.newlab("join")
    e("s_cmp_ge_u32 s40, 2")
    e(f"s_cbranch_scc1 {lhi}")
    for variant in (0, 1):
        if variant == 1: k.lab(lhi)
        NBUF = 3
        def loads(j, sb):
            b = 32 + 24*sb
            offB = 80*(15-j); offA = 64*(15-j)
            e(f"ds_read_b128 v[{b}:{b+3}], v28 offset:{offB}")
            e(f"ds_read_b128 v[{b+4}:{b+7}], v28 offset:{offB+32}")
            e(f"ds_read_b128 v[{b+8}:{b+11}], v15 offset:{offA}")
            e(f"ds_read_b128 v[{b+12}:{b+15}], v15 offset:{offA+32}")
            if variant:
                e(f"ds_read_b128 v[{b+16}:{b+19}], v15 offset:{offA+2048}")
                e(f"ds_read_b128 v[{b+20}:{b+23}], v15 offset:{offA+2048+32}")
        nl = 6 if variant else 4
        loads(0, 0); loads(1, 1)
        for j in range(16):
            sb = j % NBUF
            if j < 14:
                loads(j+2, (j+2) % NBUF)
                e(f"s_waitcnt lgkmcnt({min(2*nl, 15)})")
            else:
                e(f"s_waitcnt lgkmcnt({nl*(15-j)})")
            b = 32 + 24*sb
            e(f"v_mfma_f32_32x32x16_bf16 v[144:159], v[{b+8}:{b+11}], v[{b}:{b+3}], v[144:159]")
            if variant: e(f"v_mfma_f32_32x32x16_bf16 v[128:143], v[{b+16}:{b+19}], v[{b}:{b+3}], v[128:143]")
            e(f"v_mfma_f32_32x32x16_bf16 v[144:159], v[{b+12}:{b+15}], v[{b+4}:{b+7}], v[144:159]")
            if variant: e(f"v_mfma_f32_32x32x16_bf16 v[128:143], v[{b+20}:{b+23}], v[{b+4}:{b+7}], v[128:143]")
        if variant == 0: e(f"s_branch {ljoin}")
    k.lab(ljoin)
    e("s_barrier")
    e("s_nop 15\ns_nop 3")
    k.stamp(4, 300)
    e("v_lshlrev_b32 v28, 13, v30")
    e("v_lshl_add_u32 v28, v31, 7, v28")
    e("v_lshl_add_u32 v28, v14, 4, v28")
    for tau in range(2):
        for g in range(4):
            b = 128 + 16*tau + 4*g
            e(f"ds_write_b128 v28, v[{b}:{b+3}] offset:{C_P + tau*4096 + 32*g}")
    e("s_waitcnt lgkmcnt(0)")
    e("s_barrier")
    k.stamp(5, 300)
    e("v_lshlrev_b32 v28, 5, v0")
    for w in range(4):
        e(f"ds_read_b128 v[{32+8*w}:{35+8*w}], v28 offset:{C_P + w*8192}")
        e(f"ds_read_b128 v[{36+8*w}:{39+8*w}], v28 offset:{C_P + w*8192 + 16}")
    e("s_waitcnt lgkmcnt(0)")
    for p in range(8):
        e(f"v_add_f32 v{32+p}, v{32+p}, v{40+p}")
        e(f"v_add_f32 v{48+p}, v{48+p}, v{56+p}")
        e(f"v_add_f32 v{32+p}, v{32+p}, v{48+p}")
        k.bfround(32+p)
        e(f"v_mul_f32 v{40+p}, v{120+p}, v13")
        k.bfround(40+p)
        e(f"v_add_f32 v{32+p}, v{32+p}, v{40+p}")
        k.bfround(32+p)
        e(f"v_add_f32 v{32+p}, v{32+p}, v{112+p}")
    for j in range(4):
        e(f"v_cvt_pk_bf16_f32 v{24+j}, v{32+2*j}, v{33+2*j}")
    e("buffer_store_dwordx4 v[24:27], v1, s[12:15], s28 offen")
    k.stamp(6, 300)
    k.lab(lend)
    e("s_endpgm")
    return k
```

```python
from gen_common import *
import struct
def f2u(x): return struct.unpack("<I", struct.pack("<f", x))[0]
QSCALE = f2u(20 ** -0.5 * 1.4426950408889634)

def gemm_core(k, srdA, srdB, sA0, sA1, sB0, sB1, voff, DEPTH=8):
    e = k.e
    for r in range(64): e(f"v_mov_b32 v{64+r}, 0")
    def loads(s):
        b = 128 + 16*(s % DEPTH)
        off = (s % 4) * 1024
        e(f"buffer_load_dwordx4 v[{b}:{b+3}], v{voff}, s[{srdA}:{srdA+3}], s{sA0} offen offset:{off}")
        e(f"buffer_load_dwordx4 v[{b+4}:{b+7}], v{voff}, s[{srdA}:{srdA+3}], s{sA1} offen offset:{off}")
        e(f"buffer_load_dwordx4 v[{b+8}:{b+11}], v{voff}, s[{srdB}:{srdB+3}], s{sB0} offen offset:{off}")
        e(f"buffer_load_dwordx4 v[{b+12}:{b+15}], v{voff}, s[{srdB}:{srdB+3}], s{sB1} offen offset:{off}")
        if s % 4 == 3:
            for sr in (sA0, sA1, sB0, sB1): e(f"s_add_u32 s{sr}, s{sr}, 4096")
    for s in range(DEPTH - 1): loads(s)
    for s in range(40):
        if s + DEPTH - 1 < 40:
            loads(s + DEPTH - 1)
            e(f"s_waitcnt vmcnt({4*(DEPTH-1)})")
        else:
            e(f"s_waitcnt vmcnt({4*(39-s)})")
        b = 128 + 16*(s % DEPTH)
        for ca in range(2):
            for pb in range(2):
                a = 64 + 16*(2*ca+pb)
                e(f"v_mfma_f32_32x32x16_bf16 v[{a}:{a+15}], v[{b+4*ca}:{b+4*ca+3}], v[{b+8+4*pb}:{b+8+4*pb+3}], v[{a}:{a+15}]")
    e("s_nop 15\ns_nop 3")

def gen_qkv(name, ws_uf):
    k = K(name); e = k.e
    k.lab(name)
    lend = name + "_end"
    e("s_cmp_ge_u32 s2, 352")
    e(f"s_cbranch_scc1 {lend}")
    k.stamp_init(); k.stamp(0, 100)
    e("s_load_dwordx2 s[6:7], s[0:1], 112")
    e("s_waitcnt lgkmcnt(0)")
    k.srd(8, 6, WS_WQKVT, WQKVT_BYTES)
    k.srd(12, 6, ws_uf, XT_BYTES)
    k.srd(16, 6, WS_Q, Q_BYTES)
    k.srd(20, 6, WS_KV, KV_BYTES)
    e("s_mul_i32 s3, s2, 47663")
    e("s_lshr_b32 s3, s3, 19")
    e("s_mul_i32 s4, s3, 11")
    e("s_sub_u32 s4, s2, s4")
    e("s_mul_i32 s24, s4, 81920")
    e("s_add_u32 s25, s24, 40960")
    e("s_mul_i32 s26, s3, 81920")
    e("s_add_u32 s27, s26, 40960")
    e("v_lshlrev_b32 v1, 4, v0")
    e("v_and_b32 v2, 31, v0")
    e("v_lshrrev_b32 v3, 5, v0")
    gemm_core(k, 8, 12, 24, 25, 26, 27, 1)
    k.stamp(1, 100)
    lkv = k.newlab("kv")
    e("s_cmp_eq_u32 s4, 10")
    e(f"s_cbranch_scc1 {lkv}")
    e(f"s_mov_b32 s30, {QSCALE:#x}")
    e("v_mul_u32_u24 v4, 1280, v2")
    e("v_lshl_add_u32 v4, v3, 3, v4")
    for ca in range(2):
        for pb in range(2):
            a = 64 + 16*(2*ca+pb)
            for r in range(16): e(f"v_mul_f32 v{a+r}, s30, v{a+r}")
            for j in range(8): e(f"v_cvt_pk_bf16_f32 v{8+j}, v{a+2*j}, v{a+2*j+1}")
            e("s_mul_i32 s28, s3, 81920")
            e("s_lshl_b32 s29, s4, 7")
            e("s_add_u32 s28, s28, s29")
            e(f"s_add_u32 s28, s28, {pb*40960 + ca*64}")
            for g in range(4):
                e(f"buffer_store_dwordx2 v[{8+2*g}:{9+2*g}], v4, s[16:19], s28 offen offset:{16*g}")
    e(f"s_branch {lend}")
    k.lab(lkv)
    for pb in range(2):
        e("s_lshl_b32 s31, s3, 1")
        if pb: e("s_add_u32 s31, s31, 1")
        a = 64 + 16*pb
        for j in range(6): e(f"v_cvt_pk_bf16_f32 v{8+j}, v{a+2*j}, v{a+2*j+1}")
        e("v_lshlrev_b32 v4, 4, v2")
        e("v_lshl_add_u32 v4, v3, 3, v4")
        e("s_lshl_b32 s28, s31, 10")
        e("buffer_store_dwordx2 v[8:9], v4, s[20:23], s28 offen offset:0")
        e("buffer_store_dwordx2 v[10:11], v4, s[20:23], s28 offen offset:512")
        e("v_lshlrev_b32 v4, 3, v2")
        e("s_lshl_b32 s28, s31, 8")
        e("s_add_u32 s28, s28, 65536")
        e("v_cmp_eq_u32 vcc, 0, v3")
        e("s_and_saveexec_b64 s[32:33], vcc")
        e("buffer_store_dwordx2 v[12:13], v4, s[20:23], s28 offen")
        e("s_mov_b64 exec, s[32:33]")
        a = 64 + 32 + 16*pb
        for r in range(12): e(f"v_cvt_pk_bf16_f32 v{a+r}, v{a+r}, v{a+r}")
        e("v_lshrrev_b32 v4, 4, v2")
        e("v_mul_u32_u24 v4, 640, v4")
        e("v_bfe_u32 v5, v2, 2, 1")
        e("v_mul_u32_u24 v5, 320, v5")
        e("v_add_u32 v4, v4, v5")
        e("v_bfe_u32 v5, v2, 3, 1")
        e("v_lshl_add_u32 v4, v5, 3, v4")
        e("v_and_b32 v5, 3, v2")
        e("v_lshl_add_u32 v4, v5, 1, v4")
        e("v_lshl_add_u32 v4, v3, 6, v4")
        e("s_mul_i32 s28, s31, 1280")
        e("s_add_u32 s28, s28, 81920")
        for r in range(8):
            e(f"buffer_store_short v{a+r}, v4, s[20:23], s28 offen offset:{(8*(r>>2) + (r&3))*16}")
        e("v_cmp_eq_u32 vcc, 0, v3")
        e("s_and_saveexec_b64 s[32:33], vcc")
        for r in range(8, 12):
            e(f"buffer_store_short v{a+r}, v4, s[20:23], s28 offen offset:{(8*(r>>2) + (r&3))*16}")
        e("s_mov_b64 exec, s[32:33]")
    k.lab(lend)
    e("s_endpgm")
    return k

def gen_oproj(name, ws_xin, ws_xout, ws_stp, ws_stf, final):
    k = K(name); e = k.e
    k.lab(name)
    lend = name + "_end"
    e("s_cmp_ge_u32 s2, 320")
    e(f"s_cbranch_scc1 {lend}")
    k.stamp_init(); k.stamp(0, 100)
    e("s_load_dwordx2 s[6:7], s[0:1], 112")
    e("s_load_dwordx2 s[4:5], s[0:1], 96")
    e("s_load_dwordx2 s[44:45], s[0:1], 104")
    e("s_waitcnt lgkmcnt(0)")
    k.srd(8, 6, WS_WOT, WOT_BYTES)
    k.srd(12, 6, WS_O, Q_BYTES)
    k.srd(16, 6, ws_xin, XT_BYTES)
    if final: k.srd(20, 4, 0, XT_BYTES)
    else:
        k.srd(20, 6, ws_xout, XT_BYTES)
        k.srd(36, 6, ws_stp, 10*L*8)
        k.srd(40, 6, ws_stf, L*8)
        k.srd(48, 44, 0, 256)
    e("s_mul_i32 s3, s2, 52429")
    e("s_lshr_b32 s3, s3, 19")
    e("s_mul_i32 s34, s3, 10")
    e("s_sub_u32 s34, s2, s34")
    e("s_mul_i32 s24, s34, 81920")
    e("s_add_u32 s25, s24, 40960")
    e("s_mul_i32 s26, s3, 81920")
    e("s_add_u32 s27, s26, 40960")
    e("v_lshlrev_b32 v1, 4, v0")
    e("v_and_b32 v2, 31, v0")
    e("v_lshrrev_b32 v3, 5, v0")
    e("v_lshlrev_b32 v5, 14, v3")
    e("v_lshl_add_u32 v5, v2, 1, v5")
    e("s_lshl_b32 s33, s34, 18")
    e("s_lshl_b32 s35, s3, 7")
    e("s_add_u32 s33, s33, s35")
    for ca in range(2):
        for r in range(16):
            col = 32*ca + 8*(r>>2) + (r&3)
            e(f"s_add_u32 s35, s33, {col*4096}")
            e(f"buffer_load_ushort v{8+16*ca+r}, v5, s[16:19], s35 offen")
            e(f"buffer_load_ushort v{224+16*ca+r}, v5, s[16:19], s35 offen offset:64")
    gemm_core(k, 8, 12, 24, 25, 26, 27, 1, DEPTH=6)
    k.stamp(1, 100)
    for ca in range(2):
        for pb in range(2):
            a = 64 + 16*(2*ca+pb)
            for r in range(16):
                k.bfround(a+r)
                e(f"v_lshlrev_b32 v40, 16, v{(8 if pb == 0 else 224)+16*ca+r}")
                e(f"v_add_f32 v{a+r}, v{a+r}, v40")
    if final:
        e("v_mul_u32_u24 v4, 1280, v2")
        e("v_lshl_add_u32 v4, v3, 3, v4")
        for ca in range(2):
            for pb in range(2):
                a = 64 + 16*(2*ca+pb)
                for j in range(8): e(f"v_cvt_pk_bf16_f32 v{44+j}, v{a+2*j}, v{a+2*j+1}")
                e("s_mul_i32 s28, s3, 81920")
                e("s_lshl_b32 s29, s34, 7")
                e("s_add_u32 s28, s28, s29")
                e(f"s_add_u32 s28, s28, {pb*40960 + ca*64}")
                for g in range(4):
                    e(f"buffer_store_dwordx2 v[{44+2*g}:{45+2*g}], v4, s[20:23], s28 offen offset:{16*g}")
    else:
        for ca in range(2):
            for pb in range(2):
                a = 64 + 16*(2*ca+pb)
                for r in range(16):
                    col = 32*ca + 8*(r>>2) + (r&3)
                    e(f"v_cvt_pk_bf16_f32 v40, v{a+r}, v{a+r}")
                    e(f"s_add_u32 s35, s33, {col*4096}")
                    e(f"buffer_store_short v40, v5, s[20:23], s35 offen offset:{64*pb}")
                    e(f"v_lshlrev_b32 v{a+r}, 16, v40")
        for pb in range(2):
            a0 = 64 + 16*pb; a1 = 64 + 32 + 16*pb
            e(f"v_add_f32 v41, v{a0}, v{a1}")
            for r in range(1, 16):
                e(f"v_add_f32 v41, v41, v{a0+r}")
                e(f"v_add_f32 v41, v41, v{a1+r}")
            e("v_mov_b32 v42, v41\ns_nop 1\nv_permlane32_swap_b32 v41, v42\ns_nop 1\nv_add_f32 v41, v41, v42")
            e("v_mul_f32 v42, 0x3c800000, v41")
            e("v_mov_b32 v43, 0")
            for r in range(16):
                for aa in (a0, a1):
                    e(f"v_sub_f32 v40, v{aa+r}, v42")
                    e("v_fma_f32 v43, v40, v40, v43")
            e("v_mov_b32 v42, v43\ns_nop 1\nv_permlane32_swap_b32 v43, v42\ns_nop 1\nv_add_f32 v43, v43, v42")
            e(f"v_mov_b32 v{44+2*pb}, v41")
            e(f"v_mov_b32 v{45+2*pb}, v43")
        e("v_cmp_eq_u32 vcc, 0, v3")
        e("s_nop 1")
        e("v_cndmask_b32 v44, v46, v44, vcc")
        e("v_cndmask_b32 v45, v47, v45, vcc")
        e("v_lshlrev_b32 v4, 3, v0")
        e("s_lshl_b32 s28, s34, 14")
        e("s_lshl_b32 s29, s3, 9")
        e("s_add_u32 s28, s28, s29")
        e("buffer_store_dwordx2 v[44:45], v4, s[36:39], s28 offen sc1")
        e("s_waitcnt vmcnt(0)")
        e("v_mov_b32 v40, 1")
        e("s_lshl_b32 s28, s3, 2")
        e("v_mov_b32 v41, 0")
        e("s_mov_b64 s[30:31], exec")
        e("s_mov_b64 exec, 1")
        e("buffer_atomic_add v40, v41, s[48:51], s28 offen sc0 sc1")
        e("s_waitcnt vmcnt(0)")
        e("s_mov_b64 exec, s[30:31]")
        e("v_readfirstlane_b32 s28, v40")
        e("s_cmp_lg_u32 s28, 9")
        e(f"s_cbranch_scc1 {lend}")
        e("s_lshl_b32 s29, s3, 9")
        for g in range(10):
            e(f"s_add_u32 s28, s29, {g*16384}")
            e(f"buffer_load_dwordx2 v[{64+2*g}:{65+2*g}], v4, s[36:39], s28 offen sc1")
        e("s_waitcnt vmcnt(0)")
        e("v_add_f32 v40, v64, v66")
        for g in range(2, 10): e(f"v_add_f32 v40, v40, v{64+2*g}")
        e("v_mul_f32 v40, 0x3acccccd, v40")
        e("v_add_f32 v41, v65, v67")
        for g in range(2, 10): e(f"v_add_f32 v41, v41, v{65+2*g}")
        e("v_mov_b32 v42, 0")
        e("s_mov_b32 s28, 0x3c800000")
        for g in range(10):
            e(f"v_fma_f32 v43, v{64+2*g}, s28, -v40")
            e("v_fma_f32 v42, v43, v43, v42")
        e("s_mov_b32 s28, 0x42800000")
        e("v_fma_f32 v41, v42, s28, v41")
        e("v_mul_f32 v41, 0x3acccccd, v41")
        k.bfround(40); k.bfround(41)
        e("v_add_f32 v41, 0x3727c5ac, v41")
        k.bfround(41)
        e("v_sqrt_f32 v41, v41")
        e("s_nop 0")
        k.bfround(41)
        e("v_rcp_f32 v41, v41")
        e("s_nop 0")
        e("buffer_store_dwordx2 v[40:41], v4, s[40:43], s29 offen")
    k.lab(lend)
    e("s_endpgm")
    return k
```

```python
from gen_common import *
LN_LDS = 40960 + 2048

def gen_ln(name, ws_xin, ws_uf):
    k = K(name); e = k.e
    k.lab(name)
    lend = name + "_end"
    e("s_cmp_ge_u32 s2, 64")
    e(f"s_cbranch_scc1 {lend}")
    k.stamp_init(); k.stamp(0, 30)
    e("s_load_dwordx2 s[6:7], s[0:1], 112")
    e("s_waitcnt lgkmcnt(0)")
    k.srd(8, 6, ws_xin, XT_BYTES)
    k.srd(12, 6, ws_uf, XT_BYTES)
    e("v_and_b32 v5, 3, v0")
    e("v_lshrrev_b32 v6, 2, v0")
    e("v_lshlrev_b32 v7, 12, v6")
    e("v_lshl_add_u32 v7, v5, 4, v7")
    e("s_lshl_b32 s26, s2, 6")
    for i in range(5):
        e(f"s_add_u32 s27, s26, {i*128*4096}")
        e(f"buffer_load_dwordx4 v[{8+4*i}:{11+4*i}], v7, s[8:11], s27 offen")
    e("v_lshlrev_b32 v7, 6, v6")
    e("v_lshl_add_u32 v7, v5, 4, v7")
    for i in range(5):
        e(f"s_waitcnt vmcnt({4-i})")
        e(f"ds_write_b128 v7, v[{8+4*i}:{11+4*i}] offset:{i*8192}")
    e("v_lshrrev_b32 v1, 6, v0")
    e("v_and_b32 v2, 63, v0")
    e("v_bfe_u32 v3, v2, 5, 1")
    e("v_bfe_u32 v5, v2, 2, 2")
    e("v_lshl_add_u32 v5, v3, 3, v5")
    e("v_lshlrev_b32 v5, 6, v5")
    e("v_bfe_u32 v6, v2, 4, 1")
    e("v_lshl_add_u32 v5, v6, 5, v5")
    e("v_and_b32 v6, 3, v2")
    e("v_lshl_add_u32 v5, v6, 3, v5")
    e("v_mul_u32_u24 v6, 5120, v1")
    e("v_add_u32 v5, v5, v6")
    e("s_waitcnt lgkmcnt(0)")
    e("s_barrier")
    for s in range(5):
        e(f"ds_read_b64_tr_b16 v[{8+4*s}:{9+4*s}], v5 offset:{s*1024}")
        e(f"ds_read_b64_tr_b16 v[{10+4*s}:{11+4*s}], v5 offset:{s*1024+256}")
    e("s_waitcnt lgkmcnt(0)")
    for j in range(20):
        e(f"v_lshlrev_b32 v{32+2*j}, 16, v{8+j}")
        e(f"v_and_b32 v{33+2*j}, 0xffff0000, v{8+j}")
    def wgsum(src, off):
        e(f"v_mov_b32 v73, v{src}")
        e("s_nop 1")
        e(f"v_permlane32_swap_b32 v{src}, v73")
        e("s_nop 1")
        e(f"v_add_f32 v{src}, v{src}, v73")
        e("v_and_b32 v74, 31, v0")
        e("v_lshlrev_b32 v75, 7, v1")
        e("v_lshl_add_u32 v75, v74, 2, v75")
        e(f"ds_write_b32 v75, v{src} offset:{off}")
        e("s_waitcnt lgkmcnt(0)")
        e("s_barrier")
        e("v_lshlrev_b32 v75, 2, v74")
        for w in range(8): e(f"ds_read_b32 v{76+w}, v75 offset:{off + 128*w}")
        e("s_waitcnt lgkmcnt(0)")
        e("v_add_f32 v76, v76, v77\nv_add_f32 v78, v78, v79\nv_add_f32 v80, v80, v81\nv_add_f32 v82, v82, v83")
        e("v_add_f32 v76, v76, v78\nv_add_f32 v80, v80, v82")
        e(f"v_add_f32 v{src}, v76, v80")
    for c in range(4): e(f"v_add_f32 v{84+c}, v{32+c}, v{36+c}")
    for j in range(8, 40, 4):
        for c in range(4): e(f"v_add_f32 v{84+c}, v{84+c}, v{32+j+c}")
    e("v_add_f32 v84, v84, v85\nv_add_f32 v86, v86, v87\nv_add_f32 v72, v84, v86")
    wgsum(72, 40960)
    e("v_mul_f32 v72, 0x3acccccd, v72")
    for c in range(4): e(f"v_mov_b32 v{84+c}, 0")
    for j in range(40):
        e(f"v_sub_f32 v88, v{32+j}, v72")
        e(f"v_fma_f32 v{84+(j&3)}, v88, v88, v{84+(j&3)}")
    e("v_add_f32 v84, v84, v85\nv_add_f32 v86, v86, v87\nv_add_f32 v89, v84, v86")
    wgsum(89, 40960 + 1024)
    e("v_mul_f32 v89, 0x3acccccd, v89")
    k.bfround(89); k.bfround(72)
    e("v_add_f32 v89, 0x3727c5ac, v89")
    k.bfround(89)
    e("v_sqrt_f32 v89, v89")
    e("s_nop 0")
    k.bfround(89)
    e("v_rcp_f32 v89, v89")
    e("s_nop 0")
    for j in range(40):
        e(f"v_sub_f32 v{32+j}, v{32+j}, v72")
    for j in range(40):
        k.bfround(32+j)
    for j in range(40):
        e(f"v_mul_f32 v{32+j}, v{32+j}, v89")
    for j in range(20):
        e(f"v_cvt_pk_bf16_f32 v{8+j}, v{32+2*j}, v{33+2*j}")
    e("v_lshlrev_b32 v2, 4, v2")
    e("v_mul_u32_u24 v6, 5120, v1")
    e("v_add_u32 v2, v2, v6")
    e("s_mul_i32 s27, s2, 40960")
    for s in range(5):
        e(f"buffer_store_dwordx4 v[{8+4*s}:{11+4*s}], v2, s[12:15], s27 offen offset:{(s*1024) if s < 4 else 0}") if s < 4 else None
    e("s_add_u32 s27, s27, 4096")
    e("buffer_store_dwordx4 v[24:27], v2, s[12:15], s27 offen")
    k.stamp(1, 30)
    k.lab(lend)
    e("s_endpgm")
    return k
```

```python
from gen_common import *
PREP_GRID = 824
PREP_LDS = 41984

def gen_prep():
    k = K("prep_kernel")
    e = k.e
    k.lab("prep_kernel")
    L_kgen = "prep_kgen"; L_tile = "prep_tile"; L_kv = "prep_kv"; L_end = "prep_end"; L_x0 = "prep_x0"
    e("s_load_dwordx16 s[16:31], s[0:1], 0")
    e("s_load_dwordx8 s[32:39], s[0:1], 64")
    e("s_load_dwordx2 s[40:41], s[0:1], 112")
    e("s_waitcnt lgkmcnt(0)")
    e("s_cmp_lt_u32 s2, 640")
    e(f"s_cbranch_scc1 {L_kgen}")
    e("s_cmp_lt_u32 s2, 740")
    e(f"s_cbranch_scc1 {L_tile}")
    e("s_cmp_lt_u32 s2, 804")
    e(f"s_cbranch_scc1 {L_x0}")
    e("s_cmp_lt_u32 s2, 824")
    e(f"s_cbranch_scc1 {L_kv}")
    e("s_endpgm")

    k.lab(L_kgen)
    k.srd(44, 18, 0, 640*128*2)
    k.srd(48, 20, 0, 640*128*2)
    k.srd(52, 22, 0, 640*128*2)
    k.srd(56, 24, 0, 640*128*2)
    k.srd(60, 26, 0, 640*2)
    k.srd(64, 40, WS_KR, KR_BYTES)
    e("s_lshl_b32 s3, s2, 8")
    e("s_lshl_b32 s4, s2, 1")
    e("v_and_b32 v1, 127, v0")
    e("v_lshlrev_b32 v1, 1, v1")
    e("v_mov_b32 v2, 0")
    e("buffer_load_ushort v4, v1, s[44:47], s3 offen")
    e("buffer_load_ushort v5, v1, s[48:51], s3 offen")
    e("buffer_load_ushort v6, v1, s[52:55], s3 offen")
    e("buffer_load_ushort v7, v1, s[56:59], s3 offen")
    e("buffer_load_ushort v8, v2, s[60:63], s4 offen")
    e("s_mov_b32 s5, 0x3fb8aa3b")
    e("s_mov_b32 s6, 0x3e22f983")
    e("s_waitcnt vmcnt(0)")
    for r in (4,5,6,7,8): e(f"v_lshlrev_b32 v{r}, 16, v{r}")
    e("v_mul_f32 v8, s5, v8")
    e("v_exp_f32 v8, v8")
    e("v_mul_f32 v4, s5, v4")
    e("v_exp_f32 v4, v4")
    e("s_nop 1")
    k.bfround(8); k.bfround(4)
    e("v_mul_f32 v10, v4, v8")
    e("v_mul_f32 v11, v5, v8")
    e("v_mul_f32 v12, v6, v8")
    e("v_mul_f32 v13, v7, v8")
    e("v_mul_f32 v10, s5, v10")
    e("v_sub_f32 v10, 0, v10")
    e("v_mul_f32 v11, s6, v11")
    e("v_add_f32 v12, v12, v12")
    e("v_add_f32 v13, v13, v13")
    e("v_sub_f32 v13, 0, v13")
    e("v_lshlrev_b32 v1, 3, v1")
    e("ds_write_b128 v1, v[10:13]")
    e("v_cvt_f32_u32 v20, v0")
    e("v_cmp_gt_u32 vcc, 128, v0")
    e("v_lshlrev_b32 v2, 1, v0")
    e("v_add_u32 v2, 256, v2")
    e("v_lshlrev_b32 v3, 2, v0")
    e("v_cndmask_b32 v2, v3, v2, vcc")
    e("v_cvt_f32_u32 v21, v2")
    e("v_lshlrev_b32 v2, 3, v0")
    e("v_add_u32 v2, 1024, v2")
    e("v_min_u32 v2, 2048, v2") if False else None
    e("v_mov_b32 v3, 2048")
    e("v_min_u32 v2, v2, v3")
    e("v_cvt_f32_u32 v22, v2")
    e("v_mov_b32 v24, 0\nv_mov_b32 v25, 0\nv_mov_b32 v26, 0")
    e("v_mov_b32 v9, 0")
    e("s_waitcnt lgkmcnt(0)")
    e("s_barrier")
    e("s_mov_b32 s7, 0")
    lp = k.newlab("kl")
    k.lab(lp)
    e("ds_read_b128 v[12:15], v9")
    e("v_add_u32 v9, 16, v9")
    e("s_waitcnt lgkmcnt(0)")
    for j in range(3):
        P = 20 + j; A = 24 + j
        t0, t1, t2 = 30 + 4*j, 31 + 4*j, 32 + 4*j
        e(f"v_mul_f32 v{t0}, v12, v{P}")
        e(f"v_mul_f32 v{t1}, v13, v{P}")
        e(f"v_exp_f32 v{t0}, v{t0}")
        e(f"v_fract_f32 v{t1}, v{t1}")
        e(f"v_cos_f32 v{t2}, v{t1}")
        e(f"v_sin_f32 v{t1}, v{t1}")
    e("s_nop 0")
    for j in range(3):
        P = 20 + j; A = 24 + j
        t0, t1, t2 = 30 + 4*j, 31 + 4*j, 32 + 4*j
        e(f"v_mul_f32 v{t2}, v14, v{t2}")
        e(f"v_fma_f32 v{t2}, v15, v{t1}, v{t2}")
        e(f"v_fma_f32 v{A}, v{t0}, v{t2}, v{A}")
    e("s_add_u32 s7, s7, 1")
    e("s_cmp_lt_u32 s7, 128")
    e(f"s_cbranch_scc1 {lp}")
    e("v_lshlrev_b32 v1, 2, v0")
    e("ds_write_b32 v1, v24 offset:4096")
    e("ds_write_b32 v1, v25 offset:5120")
    e("ds_write_b32 v1, v26 offset:6144")
    e("s_waitcnt lgkmcnt(0)")
    e("s_barrier")
    e("v_lshlrev_b32 v1, 3, v0")
    for i in range(8):
        a = 40 + i
        e(f"v_sub_u32 v{a}, {2047 - i}, v1")
        e(f"v_cvt_f32_u32 v2, v{a}")
        e("v_cvt_pk_bf16_f32 v2, v2, v2")
        e("v_and_b32 v2, 0xffff, v2")
        e(f"v_add_u32 v2, {256 - 17280}, v2")
        e(f"v_cmp_gt_u32 vcc, 256, v{a}")
        e("s_nop 1")
        e(f"v_cndmask_b32 v{a}, v2, v{a}, vcc")
        e(f"v_lshlrev_b32 v{a}, 2, v{a}")
    for i in range(8):
        e(f"ds_read_b32 v{40+i}, v{40+i} offset:4096")
    e("s_waitcnt lgkmcnt(0)")
    for i in range(4):
        e(f"v_cvt_pk_bf16_f32 v{48+i}, v{40+2*i}, v{41+2*i}")
    e(f"s_mul_i32 s8, s2, {KRL*2}")
    e("v_lshlrev_b32 v1, 4, v0")
    e("buffer_store_dwordx4 v[48:51], v1, s[64:67], s8 offen")
    e("v_mov_b32 v52, 0\nv_mov_b32 v53, 0\nv_mov_b32 v54, 0\nv_mov_b32 v55, 0")
    e("v_cmp_gt_u32 vcc, 8, v0")
    e("s_and_saveexec_b64 s[10:11], vcc")
    e(f"s_cbranch_execz {L_end}")
    e("s_add_u32 s8, s8, 4096")
    e("buffer_store_dwordx4 v[52:55], v1, s[64:67], s8 offen")
    e(f"s_branch {L_end}")

    k.lab(L_tile)
    lq = k.newlab("tq"); lgo = k.newlab("tgo")
    e("s_cmp_lt_u32 s2, 690")
    e(f"s_cbranch_scc1 {lq}")
    k.srd(44, 38, 0, 640*1280); k.srd(48, 40, WS_WOT, WOT_BYTES)
    e("s_sub_u32 s13, s2, 690")
    e(f"s_branch {lgo}")
    k.lab(lq)
    k.srd(44, 32, 0, 640*1280); k.srd(48, 40, WS_WQKVT, WQKVT_BYTES)
    e("s_sub_u32 s13, s2, 640")
    k.lab(lgo)
    e("s_mul_i32 s3, s13, 52429")
    e("s_lshr_b32 s3, s3, 18")
    e("s_mul_i32 s4, s3, 5")
    e("s_sub_u32 s4, s13, s4")
    e("s_mul_i32 s5, s3, 81920")
    e("s_lshl_b32 s6, s4, 8")
    e("s_add_u32 s5, s5, s6")
    e("s_mul_i32 s6, s4, 163840")
    e("s_lshl_b32 s7, s3, 12")
    e("s_add_u32 s6, s6, s7")
    e("v_lshrrev_b32 v1, 4, v0")
    e("v_and_b32 v2, 15, v0")
    e("v_mul_u32_u24 v3, 1280, v1")
    e("v_lshl_add_u32 v3, v2, 4, v3")
    e("v_mul_u32_u24 v4, 272, v1")
    e("v_lshl_add_u32 v4, v2, 4, v4")
    for i in range(4):
        e(f"s_add_u32 s8, s5, {i*16*1280}")
        e(f"buffer_load_dwordx4 v[{8+4*i}:{11+4*i}], v3, s[44:47], s8 offen")
    e("s_waitcnt vmcnt(0)")
    for i in range(4):
        e(f"ds_write_b128 v4, v[{8+4*i}:{11+4*i}] offset:{i*16*272}")
    e("s_waitcnt lgkmcnt(0)")
    e("s_barrier")
    e("v_lshrrev_b32 v1, 6, v0")
    e("v_bfe_u32 v2, v0, 4, 2")
    e("v_and_b32 v3, 15, v0")
    e("v_lshrrev_b32 v4, 2, v3")
    e("v_and_b32 v5, 3, v3")
    e("v_lshl_add_u32 v6, v1, 4, v4")
    e("v_mul_u32_u24 v6, 272, v6")
    e("v_lshlrev_b32 v7, 5, v2")
    e("v_lshl_add_u32 v7, v5, 3, v7")
    e("v_add_u32 v6, v6, v7")
    for it in range(4):
        off = (it & 1) * 8 * 272 + (it >> 1) * 128
        e(f"ds_read_b64_tr_b16 v[{8+4*it}:{9+4*it}], v6 offset:{off}")
        e(f"ds_read_b64_tr_b16 v[{10+4*it}:{11+4*it}], v6 offset:{off + 4*272}")
    e("v_lshrrev_b32 v7, 1, v2")
    e("v_mul_u32_u24 v7, 40960, v7")
    e("v_lshl_add_u32 v7, v1, 10, v7")
    e("v_and_b32 v5, 31, v0")
    e("v_lshl_add_u32 v7, v5, 4, v7")
    e("s_add_u32 s9, s6, 81920")
    e("s_waitcnt lgkmcnt(0)")
    for it in range(4):
        so = "s6" if (it >> 1) == 0 else "s9"
        e(f"buffer_store_dwordx4 v[{8+4*it}:{11+4*it}], v7, s[48:51], {so} offen offset:{(it&1)*512}")
    e(f"s_branch {L_end}")

    k.lab(L_x0)
    XS = 1312
    k.srd(44, 16, 0, XT_BYTES); k.srd(48, 40, WS_XT0, XT_BYTES); k.srd(52, 40, WS_STF0, STF_BYTES)
    e("s_sub_u32 s13, s2, 740")
    e("s_mul_i32 s5, s13, 40960")
    e("v_lshrrev_b32 v1, 3, v0")
    e("v_and_b32 v2, 7, v0")
    e("v_mul_u32_u24 v3, 1280, v1")
    e("v_lshl_add_u32 v3, v2, 4, v3")
    e(f"v_mul_u32_u24 v4, {XS}, v1")
    e("v_lshl_add_u32 v4, v2, 4, v4")
    for i in range(10):
        e(f"buffer_load_dwordx4 v[{8+4*i}:{11+4*i}], v3, s[44:47], s5 offen offset:{128*i}")
    for i in range(10):
        e(f"s_waitcnt vmcnt({9-i})")
        e(f"ds_write_b128 v4, v[{8+4*i}:{11+4*i}] offset:{128*i}")
    def red8(v):
        e("s_nop 1")
        e(f"v_add_f32_dpp v{v}, v{v}, v{v} quad_perm:[1,0,3,2] row_mask:0xf bank_mask:0xf")
        e("s_nop 1")
        e(f"v_add_f32_dpp v{v}, v{v}, v{v} quad_perm:[2,3,0,1] row_mask:0xf bank_mask:0xf")
        e("s_nop 1")
        e(f"v_add_f32_dpp v{v}, v{v}, v{v} row_half_mirror row_mask:0xf bank_mask:0xf")
    e("v_mov_b32 v50, 0\nv_mov_b32 v51, 0\nv_mov_b32 v52, 0\nv_mov_b32 v53, 0")
    for j in range(40):
        e(f"v_lshlrev_b32 v54, 16, v{8+j}")
        e(f"v_and_b32 v55, 0xffff0000, v{8+j}")
        e(f"v_add_f32 v{50+2*(j&1)}, v{50+2*(j&1)}, v54")
        e(f"v_add_f32 v{51+2*(j&1)}, v{51+2*(j&1)}, v55")
    e("v_add_f32 v50, v50, v51\nv_add_f32 v52, v52, v53\nv_add_f32 v56, v50, v52")
    red8(56)
    e("v_mul_f32 v56, 0x3acccccd, v56")
    e("v_mov_b32 v50, 0\nv_mov_b32 v51, 0\nv_mov_b32 v52, 0\nv_mov_b32 v53, 0")
    for j in range(40):
        e(f"v_lshlrev_b32 v54, 16, v{8+j}")
        e(f"v_and_b32 v55, 0xffff0000, v{8+j}")
        e("v_sub_f32 v54, v54, v56")
        e("v_sub_f32 v55, v55, v56")
        e(f"v_fma_f32 v{50+2*(j&1)}, v54, v54, v{50+2*(j&1)}")
        e(f"v_fma_f32 v{51+2*(j&1)}, v55, v55, v{51+2*(j&1)}")
    e("v_add_f32 v50, v50, v51\nv_add_f32 v52, v52, v53\nv_add_f32 v57, v50, v52")
    red8(57)
    e("v_mul_f32 v57, 0x3acccccd, v57")
    k.bfround(56); k.bfround(57)
    e("v_add_f32 v57, 0x3727c5ac, v57")
    k.bfround(57)
    e("v_sqrt_f32 v57, v57")
    e("s_nop 0")
    k.bfround(57)
    e("v_rcp_f32 v57, v57")
    e("s_lshl_b32 s8, s13, 8")
    e("v_lshlrev_b32 v5, 3, v1")
    e("v_cmp_eq_u32 vcc, 0, v2")
    e("s_and_saveexec_b64 s[10:11], vcc")
    e("buffer_store_dwordx2 v[56:57], v5, s[52:55], s8 offen")
    e("s_mov_b64 exec, s[10:11]")
    e("s_waitcnt lgkmcnt(0)")
    e("s_barrier")
    e("v_lshrrev_b32 v1, 6, v0")
    e("v_bfe_u32 v2, v0, 4, 2")
    e("v_and_b32 v3, 15, v0")
    e("v_lshrrev_b32 v4, 2, v3")
    e("v_and_b32 v5, 3, v3")
    e("v_lshl_add_u32 v6, v2, 3, v4")
    e(f"v_mul_u32_u24 v6, {XS}, v6")
    e("v_lshl_add_u32 v6, v1, 5, v6")
    e("v_lshl_add_u32 v6, v5, 3, v6")
    for it in range(10):
        e(f"ds_read_b64_tr_b16 v[{8+4*it}:{9+4*it}], v6 offset:{128*it}")
        e(f"ds_read_b64_tr_b16 v[{10+4*it}:{11+4*it}], v6 offset:{128*it + 4*XS}")
    e("v_lshl_add_u32 v7, v1, 4, v3")
    e("v_lshlrev_b32 v7, 12, v7")
    e("v_lshl_add_u32 v7, v2, 4, v7")
    e("s_lshl_b32 s6, s13, 6")
    for it in range(10):
        e(f"s_waitcnt lgkmcnt({min(15, 2*(9-it))})")
        e(f"buffer_store_dwordx4 v[{8+4*it}:{11+4*it}], v7, s[48:51], s6 offen")
        if it < 9: e(f"s_add_u32 s6, s6, {64*4096}")
    e(f"s_branch {L_end}")

    k.lab(L_kv)
    lv = k.newlab("kvv"); lg2 = k.newlab("kvg")
    e("s_sub_u32 s13, s2, 804")
    e("s_cmp_lt_u32 s13, 10")
    e(f"s_cbranch_scc0 {lv}")
    k.srd(44, 34, 0, 640*40)
    e(f"s_branch {lg2}")
    k.lab(lv)
    k.srd(44, 36, 0, 640*40)
    k.lab(lg2)
    k.srd(52, 40, WS_WQKVT, WQKVT_BYTES)
    e("s_sub_u32 s4, s13, 10")
    e("s_cmp_lt_u32 s13, 10")
    e("s_cselect_b32 s3, s13, s4")
    e("s_mul_i32 s5, s3, 2560")
    e("v_lshrrev_b32 v1, 5, v0")
    e("v_and_b32 v2, 31, v0")
    e("v_mul_u32_u24 v3, 320, v1")
    e("v_lshl_add_u32 v3, v2, 1, v3")
    for i in range(8): e(f"v_mov_b32 v{12+i}, 0")
    e("v_cmp_gt_u32 vcc, 20, v2")
    e("s_and_saveexec_b64 s[10:11], vcc")
    for i in range(8):
        e(f"buffer_load_ushort v{12+i}, v3, s[44:47], s5 offen offset:{40*i}")
    e("s_mov_b64 exec, s[10:11]")
    e("s_lshl_b32 s6, s13, 12")
    e(f"s_add_u32 s6, s6, {20*40960}")
    e("v_lshlrev_b32 v4, 4, v0")
    e("s_waitcnt vmcnt(0)")
    for i in range(4): e(f"v_lshl_or_b32 v{8+i}, v{13+2*i}, 16, v{12+2*i}")
    e("buffer_store_dwordx4 v[8:11], v4, s[52:55], s6 offen")
    k.lab(L_end)
    e("s_endpgm")
    return k
```

```python
from gen_common import *
from gen_conv import gen_conv, CONV_LDS
from gen_ln import gen_ln, LN_LDS
from gen_gemm import gen_qkv, gen_oproj
from gen_attn import gen_attn, ATT_LDS
def kernels():
    ks = []
    att = gen_attn("attn_kernel")
    qkv = gen_qkv("qkv_kernel", WS_UF)
    ks.append((gen_conv("conv1_kernel", WS_XT0, WS_XT1, WS_STF0), 160, 640, 256, CONV_LDS))
    ks.append((gen_ln("ln1_kernel", WS_XT1, WS_UF), 96, 64, 512, LN_LDS))
    ks.append((qkv, 256, 352, 64, 0))
    ks.append((att, 208, 256, 512, ATT_LDS))
    ks.append((gen_oproj("oproj1_kernel", WS_XT1, WS_XT2, WS_STP, WS_STF1, False), 256, 320, 64, 0))
    ks.append((gen_conv("conv2_kernel", WS_XT2, WS_XT3, WS_STF1), 160, 640, 256, CONV_LDS))
    ks.append((gen_ln("ln2_kernel", WS_XT3, WS_UF), 96, 64, 512, LN_LDS))
    ks.append((qkv, 256, 352, 64, 0))
    ks.append((att, 208, 256, 512, ATT_LDS))
    ks.append((gen_oproj("oproj2_kernel", WS_XT3, None, None, None, True), 256, 320, 64, 0))
    return ks
```

```python
import os
STAMP = bool(os.environ.get('STAMP'))
L = 2048; D = 640; NST = 128
WS_XT0 = 0x0
WS_XT1 = 0x280000
WS_XT2 = 0x500000
WS_XT3 = 0x780000
XT_BYTES = D * L * 2
WS_KR = 0xA00000; KRL = 2112; KR_BYTES = D * KRL * 2
WS_WQKVT = 0xD00000; WQKVT_BYTES = 704 * 1280
WS_WOT = 0xE00000; WOT_BYTES = 640 * 1280
WS_Q = 0xF00000; Q_BYTES = L * D * 2
WS_O = 0x1180000
WS_KV = 0x1400000; KV_BYTES = 163840
WS_ST0 = 0x1430000; ST_BYTES = 5 * L * 8
WS_ST1 = 0x1450000
WS_END = 0x1470000

class K:
    def __init__(self, name):
        self.name = name; self.t = []; self.nlab = 0
    def e(self, s):
        for ln in s.strip().split("\n"):
            ln = ln.strip()
            if ln: self.t.append("    " + ln)
    def lab(self, l): self.t.append(l + ":")
    def newlab(self, p="L"):
        self.nlab += 1; return f"{self.name}_{p}{self.nlab}"
    def text(self): return "\n".join(self.t)
    def ldarg(self, sreg, slot): self.e(f"s_load_dwordx2 s[{sreg}:{sreg+1}], s[0:1], {slot*8}")
    def srd(self, s, base, off, size):
        if off:
            self.e(f"s_add_u32 s{s}, s{base}, {off:#x}")
            self.e(f"s_addc_u32 s{s+1}, s{base+1}, 0")
        else:
            self.e(f"s_mov_b32 s{s}, s{base}")
            self.e(f"s_mov_b32 s{s+1}, s{base+1}")
        self.e(f"s_mov_b32 s{s+2}, {size:#x}")
        self.e(f"s_mov_b32 s{s+3}, 0x00020000")
    def stamp_init(self):
        if not STAMP: return
        self.e("s_load_dwordx2 s[92:93], s[0:1], 104")
        self.e("s_waitcnt lgkmcnt(0)")
        self.e("s_mov_b32 s94, 256\ns_mov_b32 s95, 0x00020000")
    def stamp(self, i, wg=0):
        if not STAMP: return
        l = self.newlab("st")
        self.e(f"s_cmp_lg_u32 s2, {wg}")
        self.e(f"s_cbranch_scc1 {l}")
        self.e("s_memtime s[90:91]")
        self.e("s_waitcnt lgkmcnt(0)")
        self.e("v_mov_b32 v255, s90")
        self.e("v_lshrrev_b32 v254, 6, v0")
        self.e("v_lshlrev_b32 v254, 5, v254")
        self.e(f"buffer_store_dword v255, v254, s[92:95], 0 offen offset:{4*i}")
        self.lab(l)
    def bfround(self, v, tmp=None):
        self.e(f"v_cvt_pk_bf16_f32 v{v}, v{v}, v{v}")
        self.e(f"v_lshlrev_b32 v{v}, 16, v{v}")

def descriptor(name, vgpr, sgpr=96):
    acc = (vgpr + 3) // 4 * 4
    return f""".amdhsa_kernel {name}
  .amdhsa_next_free_vgpr {vgpr}
  .amdhsa_next_free_sgpr {sgpr}
  .amdhsa_accum_offset {acc}
  .amdhsa_group_segment_fixed_size 0
  .amdhsa_kernarg_size 120
  .amdhsa_user_sgpr_count 2
  .amdhsa_user_sgpr_kernarg_segment_ptr 1
  .amdhsa_system_sgpr_workgroup_id_x 1
  .amdhsa_float_denorm_mode_32 3
.end_amdhsa_kernel
"""
```

```python
from gen_common import *
import os
ATT_LDS = 163840
ATT_VGPR = 184
GRP = 40960

def gen_attn(name):
    k = K(name); e = k.e
    k.lab(name)
    lend = name + "_end"
    e("s_cmp_ge_u32 s2, 256")
    e(f"s_cbranch_scc1 {lend}")
    k.stamp_init(); k.stamp(0, 100); k.rt(0)
    e("s_load_dwordx2 s[6:7], s[0:1], 112")
    e("v_lshrrev_b32 v2, 6, v0")
    e("s_nop 0")
    e("v_readfirstlane_b32 s3, v2")
    e("s_waitcnt lgkmcnt(0)")
    k.srd(8, 6, WS_KV, KV_BYTES)
    k.srd(12, 6, WS_Q, Q_BYTES)
    k.srd(16, 6, WS_O, Q_BYTES)
    e("s_and_b32 s30, s3, 3")
    e("s_lshr_b32 s31, s3, 2")
    e("s_lshl_b32 s4, s2, 3")
    e("s_lshl_b32 s5, s30, 1")
    e("s_add_u32 s4, s4, s5")
    e("s_mul_i32 s5, s4, 1280")
    e("v_and_b32 v3, 31, v0")
    e("v_bfe_u32 v4, v0, 5, 1")
    e("v_mul_u32_u24 v5, 40, v3")
    e("v_lshl_add_u32 v6, v4, 4, v5")
    e("buffer_load_dwordx4 v[8:11], v6, s[12:15], s5 offen")
    e("buffer_load_dwordx2 v[12:13], v5, s[12:15], s5 offen offset:32")
    e("buffer_load_dwordx4 v[16:19], v6, s[12:15], s5 offen offset:1280")
    e("buffer_load_dwordx2 v[20:21], v5, s[12:15], s5 offen offset:1312")
    e("v_and_b32 v1, 63, v0")
    e("v_lshlrev_b32 v1, 4, v1")
    e("s_mul_i32 s20, s3, 5120")
    def fill(g):
        for c in range(5):
            e("s_mov_b32 m0, s20")
            e("buffer_load_dwordx4 v1, s[8:11], s20 offen lds")
            e(f"s_add_u32 s20, s20, {1024 if c < 4 else GRP - 4096}")
    fill(0)
    KB = (24, 32); VB = (40, 48)
    SA = (64, 96); SB = (80, 112)
    PA = 128; PB = 136; OA = 144; OB = 160
    for b in KB: e(f"v_mov_b32 v{b+6}, 0\nv_mov_b32 v{b+7}, 0")
    e("v_cmp_eq_u32 vcc, 20, v3")
    e("v_mov_b32 v7, 0x3f803f80")
    for r in range(40, 56): e(f"v_cndmask_b32 v{r}, 0, v7, vcc")
    for r in range(32): e(f"v_mov_b32 v{OA+r}, 0")
    e("s_lshl_b32 s21, s31, 13")
    e("v_add_u32 v56, s21, v1")
    e("v_lshlrev_b32 v57, 3, v3")
    e("s_lshl_b32 s21, s31, 11")
    e("s_add_u32 s21, s21, 16384")
    e("v_add_u32 v57, s21, v57")
    e("v_mul_u32_u24 v58, 320, v4")
    e("v_lshl_add_u32 v58, v3, 4, v58")
    e("s_mul_i32 s21, s31, 10240")
    e("s_add_u32 s21, s21, 20480")
    e("v_add_u32 v58, s21, v58")
    e("s_mov_b32 s22, 0x000fffff")
    e("s_mov_b32 s23, 0x000fffff")
    e("s_waitcnt vmcnt(0)")
    e("v_cmp_eq_u32 vcc, 0, v4")
    for b in (12, 20):
        e(f"v_mov_b32 v{b+2}, 0\nv_mov_b32 v{b+3}, 0")
        e(f"v_cndmask_b32 v{b}, 0, v{b}, vcc")
        e(f"v_cndmask_b32 v{b+1}, 0, v{b+1}, vcc")
    k.stamp(1, 100)
    e("s_barrier")
    k.stamp(2, 100)
    fill(1)
    def offs(T, cur):
        g, i = T >> 3, T & 7
        d = (g - cur) * GRP
        return d + i*1024, d + i*256, d + i*1280
    def ldK(T, cur):
        if T > 31: return 0
        kb = KB[T & 1]; o = offs(T, cur)
        e(f"ds_read_b128 v[{kb}:{kb+3}], v56 offset:{o[0]}")
        e(f"ds_read_b64 v[{kb+4}:{kb+5}], v57 offset:{o[1]}")
        return 2
    def ldV(T, cur):
        if T > 31: return 0
        vb = VB[T & 1]; o = offs(T, cur)
        e("s_mov_b64 exec, s[22:23]")
        e(f"ds_read_b128 v[{vb}:{vb+3}], v58 offset:{o[2]}")
        e(f"ds_read_b128 v[{vb+4}:{vb+7}], v58 offset:{o[2]+640}")
        e("s_mov_b64 exec, -1")
        return 2
    def mf(d, a, b, c):
        cc = "0" if c is None else f"v[{c}:{c+15}]"
        e(f"v_mfma_f32_32x32x16_bf16 v[{d}:{d+15}], v[{a}:{a+3}], v[{b}:{b+3}], {cc}")
    def exps(s, lo, hi):
        for r in range(lo, hi): e(f"v_exp_f32 v{s+r}, v{s+r}")
    def cvts(p, s):
        for j in range(8): e(f"v_cvt_pk_bf16_f32 v{p+j}, v{s+2*j}, v{s+2*j+1}")
    ldK(0, 0); ldV(0, 0); ldK(1, 0)
    e("s_waitcnt lgkmcnt(4)")
    mf(SA[0], KB[0], 8, None); mf(SB[0], KB[0], 16, None)
    mf(SA[0], KB[0]+4, 12, SA[0]); mf(SB[0], KB[0]+4, 20, SB[0])
    e("s_nop 15\ns_nop 3")
    k.stamp(3, 100)
    cur = 0
    for T in range(32):
        X = T & 1; Y = X ^ 1
        nxt = T + 1 <= 31
        if (T & 7) == 6 and T < 24:
            e("s_waitcnt vmcnt(0)")
            e("s_barrier")
            if T < 16: fill((T >> 3) + 2)
        kb = KB[Y]; vbp = VB[Y]
        if nxt:
            e("s_waitcnt lgkmcnt(2)" if T > 0 else "s_waitcnt lgkmcnt(0)")
            mf(SA[Y], kb, 8, None)
        exps(SA[X], 0, 4)
        if T > 0: mf(OB, vbp, PB, OB)
        exps(SA[X], 4, 8)
        if nxt: mf(SB[Y], kb, 16, None)
        exps(SA[X], 8, 12)
        if T > 0: mf(OB, vbp+4, PB+4, OB)
        exps(SA[X], 12, 16)
        if nxt: mf(SA[Y], kb+4, 12, SA[Y])
        n1 = ldK(T+2, cur)
        cvts(PA, SA[X])
        if nxt: mf(SB[Y], kb+4, 20, SB[Y])
        exps(SB[X], 0, 4)
        e(f"s_waitcnt lgkmcnt({n1})")
        vb = VB[X]
        mf(OA, vb, PA, OA)
        exps(SB[X], 4, 12)
        mf(OA, vb+4, PA+4, OA)
        exps(SB[X], 12, 16)
        ldV(T+1, cur)
        cvts(PB, SB[X])
        if (T & 7) == 7 and T < 31:
            cur += 1
            e(f"v_add_u32 v56, {GRP}, v56")
            e(f"v_add_u32 v57, {GRP}, v57")
            e(f"v_add_u32 v58, {GRP}, v58")
    e("s_nop 0")
    mf(OB, VB[1], PB, OB)
    mf(OB, VB[1]+4, PB+4, OB)
    k.stamp(4, 100)
    e("s_nop 15\ns_nop 3")
    e("s_barrier")
    e("v_and_b32 v1, 63, v0")
    e("v_lshlrev_b32 v1, 4, v1")
    e("s_mul_i32 s21, s30, 6144")
    e("v_add_u32 v1, s21, v1")
    llo = k.newlab("lo")
    e("s_cmp_eq_u32 s31, 0")
    e(f"s_cbranch_scc1 {llo}")
    for j in range(3):
        e(f"ds_write_b128 v1, v[{OA+4*j}:{OA+4*j+3}] offset:{1024*j}")
        e(f"ds_write_b128 v1, v[{OB+4*j}:{OB+4*j+3}] offset:{3072+1024*j}")
    e("s_waitcnt lgkmcnt(0)")
    e("s_barrier")
    e("s_endpgm")
    k.lab(llo)
    e("s_barrier")
    for j in range(6):
        e(f"ds_read_b128 v[{64+4*j}:{67+4*j}], v1 offset:{1024*j}")
    e("s_waitcnt lgkmcnt(0)")
    for r in range(12):
        e(f"v_add_f32 v{OA+r}, v{OA+r}, v{64+r}")
        e(f"v_add_f32 v{OB+r}, v{OB+r}, v{76+r}")
    lfb = k.newlab("fb"); lfin = k.newlab("fin")
    for (o, t) in ((OA, 60), (OB, 62)):
        e(f"v_mov_b32 v{t}, v{o+8}")
        e(f"v_mov_b32 v{t+1}, v{o+8}")
        e("s_nop 1")
        e(f"v_permlane32_swap_b32 v{t}, v{t+1}")
    e("s_nop 1")
    e("s_mov_b32 s24, 0x7f000000" if os.environ.get("FORCE_FB") else "s_mov_b32 s24, 0x0d800000")
    e("s_mov_b32 s25, 0x71800000")
    e("v_cmp_nle_f32 vcc, s24, v61")
    e("v_cmp_nge_f32 s[26:27], s25, v61")
    e("s_or_b64 s[28:29], vcc, s[26:27]")
    e("v_cmp_nle_f32 vcc, s24, v63")
    e("v_cmp_nge_f32 s[26:27], s25, v63")
    e("s_or_b64 s[28:29], s[28:29], vcc")
    e("s_or_b64 s[28:29], s[28:29], s[26:27]")
    e("s_cmp_lg_u64 s[28:29], 0")
    e(f"s_cbranch_scc1 {lfb}")
    k.lab(lfin)
    def store(o, lreg, rowadd):
        e(f"v_rcp_f32 v59, v{lreg}")
        e("s_nop 0")
        for r in range(12): e(f"v_mul_f32 v{o+r}, v{o+r}, v59")
        for j in range(6): e(f"v_cvt_pk_bf16_f32 v{64+j}, v{o+2*j}, v{o+2*j+1}")
        e(f"s_add_u32 s32, s4, {rowadd}")
        e("s_lshr_b32 s26, s32, 5")
        e("s_mul_i32 s26, s26, 40960")
        e("s_and_b32 s27, s32, 31")
        e("s_lshl_b32 s27, s27, 4")
        e("s_add_u32 s26, s26, s27")
        e("v_mul_u32_u24 v6, 20, v3")
        e("v_lshl_add_u32 v6, v4, 2, v6")
        for g in range(3):
            if g: e("v_add_u32 v6, 8, v6")
            e("v_lshrrev_b32 v7, 3, v6")
            e("v_lshlrev_b32 v7, 9, v7")
            e("v_and_b32 v5, 7, v6")
            e("v_lshl_add_u32 v7, v5, 1, v7")
            if g == 2:
                e("v_cmp_eq_u32 vcc, 0, v4")
                e("s_and_saveexec_b64 s[28:29], vcc")
            e(f"buffer_store_dwordx2 v[{64+2*g}:{65+2*g}], v7, s[16:19], s26 offen")
        e("s_mov_b64 exec, -1")
    store(OA, 61, 0)
    store(OB, 63, 1)
    k.stamp(5, 100); k.rt(1)
    e("s_endpgm")
    k.lab(lfb)
    e("v_and_b32 v56, 63, v0")
    e("v_lshlrev_b32 v56, 4, v56")
    e("v_lshlrev_b32 v57, 3, v3")
    e("v_mul_u32_u24 v58, 320, v4")
    e("v_lshl_add_u32 v58, v3, 4, v58")
    for (o, q, lreg) in ((OA, 8, 61), (OB, 16, 63)):
        for r in range(16): e(f"v_mov_b32 v{o+r}, 0")
        e("v_mov_b32 v60, 0xff7fffff")
        e("s_mov_b32 s33, 0")
        lp = k.newlab("fbl")
        k.lab(lp)
        e("s_lshr_b32 s34, s33, 4")
        e(f"s_mul_i32 s34, s34, {GRP}")
        e("s_and_b32 s35, s33, 15")
        e("s_lshl_b32 s36, s35, 10")
        e("s_add_u32 s36, s36, s34")
        e("buffer_load_dwordx4 v[24:27], v56, s[8:11], s36 offen")
        e("s_lshl_b32 s36, s35, 8")
        e("s_add_u32 s36, s36, s34")
        e("s_add_u32 s36, s36, 16384")
        e("buffer_load_dwordx2 v[28:29], v57, s[8:11], s36 offen")
        e("s_mul_i32 s36, s35, 1280")
        e("s_add_u32 s36, s36, s34")
        e("s_add_u32 s36, s36, 20480")
        e("s_mov_b64 exec, s[22:23]")
        e("buffer_load_dwordx4 v[40:43], v58, s[8:11], s36 offen")
        e("buffer_load_dwordx4 v[44:47], v58, s[8:11], s36 offen offset:640")
        e("s_mov_b64 exec, -1")
        e("s_waitcnt vmcnt(0)")
        mf(64, 24, q, None)
        mf(64, 28, q+4, 64)
        e("s_nop 15\ns_nop 7")
        e("v_max3_f32 v80, v64, v65, v66")
        for j in range(3, 15, 2): e(f"v_max3_f32 v80, v80, v{64+j}, v{64+j+1}")
        e("v_max3_f32 v80, v80, v79, v60")
        e("v_mov_b32 v81, v80")
        e("s_nop 1")
        e("v_permlane32_swap_b32 v80, v81")
        e("s_nop 1")
        e("v_max_f32 v80, v80, v81")
        e("v_sub_f32 v81, v60, v80")
        e("v_exp_f32 v81, v81")
        e("v_mov_b32 v60, v80")
        for r in range(16):
            e(f"v_sub_f32 v{64+r}, v{64+r}, v80")
            e(f"v_mul_f32 v{o+r}, v{o+r}, v81")
        for r in range(16): e(f"v_exp_f32 v{64+r}, v{64+r}")
        e("s_nop 0")
        cvts(PA, 64)
        e("s_nop 1")
        mf(o, 40, PA, o)
        mf(o, 44, PA+4, o)
        e("s_nop 15\ns_nop 7")
        e("s_add_u32 s33, s33, 1")
        e("s_cmp_lt_u32 s33, 64")
        e(f"s_cbranch_scc1 {lp}")
        e(f"v_mov_b32 v{lreg-1}, v{o+8}")
        e(f"v_mov_b32 v{lreg}, v{o+8}")
        e("s_nop 1")
        e(f"v_permlane32_swap_b32 v{lreg-1}, v{lreg}")
        e("s_nop 1")
    e(f"s_branch {lfin}")
    k.lab(lend)
    e("s_endpgm")
    return k
```

```python
import os
STAMP = bool(os.environ.get('STAMP'))
L = 2048; D = 640; NST = 128
WS_XT0 = 0x0
WS_XT1 = 0x280000
WS_XT2 = 0x500000
WS_XT3 = 0x780000
XT_BYTES = D * L * 2
WS_KR = 0xA00000; KRL = 2112; KR_BYTES = D * KRL * 2
WS_WQKVT = 0xD00000; WQKVT_BYTES = 704 * 1280
WS_WOT = 0xE00000; WOT_BYTES = 640 * 1280
WS_Q = 0xF00000; Q_BYTES = L * D * 2
WS_O = 0x1180000
WS_KV = 0x1400000; KV_BYTES = 163840
WS_STF0 = 0x1430000; STF_BYTES = L * 8
WS_STF1 = 0x1438000
WS_STP = 0x1440000; STP_BYTES = 10 * L * 8
WS_CNT = 0x1500000; CNT_BYTES = 64 * 128
WS_UF = 0x1500000
WS_END = 0x1780000

class K:
    def __init__(self, name):
        self.name = name; self.t = []; self.nlab = 0
    def e(self, s):
        for ln in s.strip().split("\n"):
            ln = ln.strip()
            if ln: self.t.append("    " + ln)
    def lab(self, l): self.t.append(l + ":")
    def newlab(self, p="L"):
        self.nlab += 1; return f"{self.name}_{p}{self.nlab}"
    def text(self): return "\n".join(self.t)
    def ldarg(self, sreg, slot): self.e(f"s_load_dwordx2 s[{sreg}:{sreg+1}], s[0:1], {slot*8}")
    def srd(self, s, base, off, size):
        if off:
            self.e(f"s_add_u32 s{s}, s{base}, {off:#x}")
            self.e(f"s_addc_u32 s{s+1}, s{base+1}, 0")
        else:
            self.e(f"s_mov_b32 s{s}, s{base}")
            self.e(f"s_mov_b32 s{s+1}, s{base+1}")
        self.e(f"s_mov_b32 s{s+2}, {size:#x}")
        self.e(f"s_mov_b32 s{s+3}, 0x00020000")
    def stamp_init(self):
        if not STAMP: return
        self.e("s_load_dwordx2 s[92:93], s[0:1], 104")
        self.e("s_waitcnt lgkmcnt(0)")
        self.e("s_mov_b32 s94, 256\ns_mov_b32 s95, 0x00020000")
    def stamp(self, i, wg=0):
        if not STAMP: return
        l = self.newlab("st")
        self.e(f"s_cmp_lg_u32 s2, {wg}")
        self.e(f"s_cbranch_scc1 {l}")
        self.e("s_memtime s[90:91]")
        self.e("s_waitcnt lgkmcnt(0)")
        self.e("v_mov_b32 v255, s90")
        self.e("v_lshrrev_b32 v254, 6, v0")
        self.e("v_lshlrev_b32 v254, 5, v254")
        self.e(f"buffer_store_dword v255, v254, s[92:95], 0 offen offset:{4*i}")
        self.lab(l)
    def rt(self, i):
        if not STAMP: return
        self.e("s_load_dwordx2 s[84:85], s[0:1], 112")
        self.e("s_memrealtime s[90:91]")
        self.e("s_waitcnt lgkmcnt(0)")
        self.e(f"s_add_u32 s84, s84, {WS_END:#x}")
        self.e("s_addc_u32 s85, s85, 0")
        self.e("s_mov_b32 s86, 0x100000\ns_mov_b32 s87, 0x00020000")
        self.e("v_mov_b32 v255, s90")
        self.e("v_lshrrev_b32 v254, 6, v0")
        self.e("v_lshlrev_b32 v254, 3, v254")
        self.e("s_lshl_b32 s88, s2, 6")
        self.e(f"buffer_store_dword v255, v254, s[84:87], s88 offen offset:{4*i}")
    def bfround(self, v, tmp=None):
        self.e(f"v_cvt_pk_bf16_f32 v{v}, v{v}, v{v}")
        self.e(f"v_lshlrev_b32 v{v}, 16, v{v}")

def descriptor(name, vgpr, sgpr=96):
    acc = (vgpr + 3) // 4 * 4
    return f""".amdhsa_kernel {name}
  .amdhsa_next_free_vgpr {vgpr}
  .amdhsa_next_free_sgpr {sgpr}
  .amdhsa_accum_offset {acc}
  .amdhsa_group_segment_fixed_size 0
  .amdhsa_kernarg_size 120
  .amdhsa_user_sgpr_count 2
  .amdhsa_user_sgpr_kernarg_segment_ptr 1
  .amdhsa_system_sgpr_workgroup_id_x 1
  .amdhsa_float_denorm_mode_32 3
.end_amdhsa_kernel
"""
```

```python
from gen_common import *

CSTR = 4416
C_KR = 0
C_P = 0
C_U = 35328
CONV_LDS = 42944

def gen_conv(name, ws_xin, ws_xout, ws_stf):
    k = K(name); e = k.e
    k.lab(name)
    lend = name + "_end"
    e("s_cmp_ge_u32 s2, 640")
    e(f"s_cbranch_scc1 {lend}")
    k.stamp_init(); k.stamp(0, 300)
    e("s_load_dwordx2 s[4:5], s[0:1], 48")
    e("s_load_dwordx2 s[6:7], s[0:1], 112")
    e("s_waitcnt lgkmcnt(0)")
    k.srd(8, 6, ws_xin, XT_BYTES)
    k.srd(12, 6, ws_xout, XT_BYTES)
    k.srd(16, 6, ws_stf, L*8)
    k.srd(20, 6, WS_KR, KR_BYTES)
    k.srd(24, 4, 0, 1280)
    e("s_lshl_b32 s28, s2, 12")
    e(f"s_mul_i32 s29, s2, {KRL*2}")
    e("s_lshl_b32 s30, s2, 1")
    e("v_lshlrev_b32 v1, 4, v0")
    e("v_lshlrev_b32 v2, 6, v0")
    e("v_mov_b32 v3, 0")
    e("buffer_load_dwordx4 v[32:35], v1, s[20:23], s29 offen")
    e("buffer_load_dwordx4 v[36:39], v1, s[20:23], s29 offen offset:16")
    e("buffer_load_dwordx4 v[4:7], v1, s[8:11], s28 offen")
    for q in range(4):
        e(f"buffer_load_dwordx4 v[{96+4*q}:{99+4*q}], v2, s[16:19], 0 offen offset:{16*q}")
    e("buffer_load_ushort v13, v3, s[24:27], s30 offen")
    e("v_mov_b32 v20, 0\nv_mov_b32 v21, 0\nv_mov_b32 v22, 0\nv_mov_b32 v23, 0")
    e("v_cmp_gt_u32 vcc, 155, v0")
    e("s_and_saveexec_b64 s[32:33], vcc")
    e(f"ds_write_b128 v1, v[20:23] offset:{C_U}")
    e("s_mov_b64 exec, s[32:33]")
    e("v_lshrrev_b32 v8, 2, v0")
    e(f"v_mul_u32_u24 v8, {CSTR}, v8")
    e("v_and_b32 v9, 3, v0")
    e("v_lshl_add_u32 v8, v9, 4, v8")
    e("v_cmp_gt_u32 vcc, 32, v0")
    e("s_and_saveexec_b64 s[32:33], vcc")
    e("ds_write_b128 v8, v[20:23] offset:4096")
    e("s_mov_b64 exec, s[32:33]")
    e("s_waitcnt vmcnt(6)")
    for j in range(1, 8): e(f"v_mov_b32 v{39+j}, v{32+j}")
    for j in range(7): e(f"v_alignbit_b32 v{48+j}, v{33+j}, v{32+j}, 16")
    for j in range(1, 7): e(f"v_mov_b32 v{55+j}, v{48+j}")
    for c in range(8):
        ee = c >> 1
        if c & 1 == 0: b = (32 + ee) if ee % 2 == 0 else (40 + ee - 1)
        else: b = (48 + ee) if ee % 2 == 0 else (56 + ee - 1)
        e(f"ds_write_b128 v1, v[{b}:{b+3}] offset:{C_KR + c*CSTR}")
    e("s_waitcnt vmcnt(0)")
    k.stamp(1, 300)
    for j in range(4):
        e(f"v_lshlrev_b32 v{112+2*j}, 16, v{4+j}")
        e(f"v_and_b32 v{113+2*j}, 0xffff0000, v{4+j}")
    for p in range(8):
        e(f"v_sub_f32 v{120+p}, v{112+p}, v{96+2*p}")
        k.bfround(120+p)
        e(f"v_mul_f32 v{120+p}, v{120+p}, v{97+2*p}")
    for j in range(4):
        e(f"v_cvt_pk_bf16_f32 v{24+j}, v{120+2*j}, v{121+2*j}")
    e("v_lshrrev_b32 v28, 2, v0")
    e("v_mul_u32_u24 v28, 80, v28")
    e("v_and_b32 v29, 3, v0")
    e("v_lshl_add_u32 v28, v29, 4, v28")
    e(f"ds_write_b128 v28, v[24:27] offset:{C_U + 31*80}")
    for j in range(4):
        e(f"v_lshlrev_b32 v{120+2*j}, 16, v{24+j}")
        e(f"v_and_b32 v{121+2*j}, 0xffff0000, v{24+j}")
    e("v_lshlrev_b32 v13, 16, v13")
    e("v_lshrrev_b32 v30, 6, v0")
    e("s_nop 0")
    e("v_readfirstlane_b32 s40, v30")
    e("v_and_b32 v31, 31, v0")
    e("v_bfe_u32 v14, v0, 5, 1")
    e("v_lshlrev_b32 v15, 10, v30")
    e(f"v_sub_u32 v15, {2*(2047 - 32*15 - 7)}, v15")
    e("v_lshrrev_b32 v28, 3, v31")
    e("v_lshlrev_b32 v28, 4, v28")
    e("v_sub_u32 v15, v15, v28")
    e("v_lshl_add_u32 v15, v14, 4, v15")
    e("v_sub_u32 v28, 7, v31")
    e("v_and_b32 v28, 7, v28")
    e(f"v_mul_u32_u24 v28, {CSTR}, v28")
    e("v_add_u32 v15, v15, v28")
    e("v_lshlrev_b32 v28, 4, v30")
    e("v_sub_u32 v28, v31, v28")
    e("v_add_u32 v28, 48, v28")
    e("v_mul_u32_u24 v28, 80, v28")
    e("v_lshl_add_u32 v28, v14, 4, v28")
    e(f"v_add_u32 v28, {C_U}, v28")
    for r in range(32): e(f"v_mov_b32 v{128+r}, 0")
    e("s_waitcnt lgkmcnt(0)")
    k.stamp(2, 300)
    e("s_barrier")
    k.stamp(3, 300)
    lhi = k.newlab("hi"); ljoin = k.newlab("join")
    e("s_cmp_ge_u32 s40, 2")
    e(f"s_cbranch_scc1 {lhi}")
    for variant in (0, 1):
        if variant == 1: k.lab(lhi)
        NBUF = 3
        def loads(j, sb):
            b = 32 + 24*sb
            offB = 80*(15-j); offA = 64*(15-j)
            e(f"ds_read_b128 v[{b}:{b+3}], v28 offset:{offB}")
            e(f"ds_read_b128 v[{b+4}:{b+7}], v28 offset:{offB+32}")
            e(f"ds_read_b128 v[{b+8}:{b+11}], v15 offset:{offA}")
            e(f"ds_read_b128 v[{b+12}:{b+15}], v15 offset:{offA+32}")
            if variant:
                e(f"ds_read_b128 v[{b+16}:{b+19}], v15 offset:{offA+2048}")
                e(f"ds_read_b128 v[{b+20}:{b+23}], v15 offset:{offA+2048+32}")
        nl = 6 if variant else 4
        loads(0, 0); loads(1, 1)
        for j in range(16):
            sb = j % NBUF
            if j < 14:
                loads(j+2, (j+2) % NBUF)
                e(f"s_waitcnt lgkmcnt({min(2*nl, 15)})")
            else:
                e(f"s_waitcnt lgkmcnt({nl*(15-j)})")
            b = 32 + 24*sb
            e(f"v_mfma_f32_32x32x16_bf16 v[144:159], v[{b+8}:{b+11}], v[{b}:{b+3}], v[144:159]")
            if variant: e(f"v_mfma_f32_32x32x16_bf16 v[128:143], v[{b+16}:{b+19}], v[{b}:{b+3}], v[128:143]")
            e(f"v_mfma_f32_32x32x16_bf16 v[144:159], v[{b+12}:{b+15}], v[{b+4}:{b+7}], v[144:159]")
            if variant: e(f"v_mfma_f32_32x32x16_bf16 v[128:143], v[{b+20}:{b+23}], v[{b+4}:{b+7}], v[128:143]")
        if variant == 0: e(f"s_branch {ljoin}")
    k.lab(ljoin)
    e("s_barrier")
    e("s_nop 15\ns_nop 3")
    k.stamp(4, 300)
    e("v_lshlrev_b32 v28, 13, v30")
    e("v_lshl_add_u32 v28, v31, 7, v28")
    e("v_lshl_add_u32 v28, v14, 4, v28")
    for tau in range(2):
        for g in range(4):
            b = 128 + 16*tau + 4*g
            e(f"ds_write_b128 v28, v[{b}:{b+3}] offset:{C_P + tau*4096 + 32*g}")
    e("s_waitcnt lgkmcnt(0)")
    e("s_barrier")
    k.stamp(5, 300)
    e("v_lshlrev_b32 v28, 5, v0")
    for w in range(4):
        e(f"ds_read_b128 v[{32+8*w}:{35+8*w}], v28 offset:{C_P + w*8192}")
        e(f"ds_read_b128 v[{36+8*w}:{39+8*w}], v28 offset:{C_P + w*8192 + 16}")
    e("s_waitcnt lgkmcnt(0)")
    for p in range(8):
        e(f"v_add_f32 v{32+p}, v{32+p}, v{40+p}")
        e(f"v_add_f32 v{48+p}, v{48+p}, v{56+p}")
        e(f"v_add_f32 v{32+p}, v{32+p}, v{48+p}")
        k.bfround(32+p)
        e(f"v_mul_f32 v{40+p}, v{120+p}, v13")
        k.bfround(40+p)
        e(f"v_add_f32 v{32+p}, v{32+p}, v{40+p}")
        k.bfround(32+p)
        e(f"v_add_f32 v{32+p}, v{32+p}, v{112+p}")
    for j in range(4):
        e(f"v_cvt_pk_bf16_f32 v{24+j}, v{32+2*j}, v{33+2*j}")
    e("v_lshrrev_b32 v28, 2, v0")
    e("v_mul_u32_u24 v28, 40960, v28")
    e("v_and_b32 v29, 3, v0")
    e("v_lshl_add_u32 v28, v29, 4, v28")
    e("s_lshl_b32 s28, s2, 6")
    e("buffer_store_dwordx4 v[24:27], v28, s[12:15], s28 offen")
    k.stamp(6, 300)
    k.lab(lend)
    e("s_endpgm")
    return k
```

```python
from gen_common import *
import struct
def f2u(x): return struct.unpack("<I", struct.pack("<f", x))[0]
QSCALE = f2u(20 ** -0.5 * 1.4426950408889634)

def gemm_core(k, srdA, srdB, sA0, sA1, sB0, sB1, voff, DEPTH=8):
    e = k.e
    for r in range(64): e(f"v_mov_b32 v{64+r}, 0")
    def loads(s):
        b = 128 + 16*(s % DEPTH)
        off = (s % 4) * 1024
        e(f"buffer_load_dwordx4 v[{b}:{b+3}], v{voff}, s[{srdA}:{srdA+3}], s{sA0} offen offset:{off}")
        e(f"buffer_load_dwordx4 v[{b+4}:{b+7}], v{voff}, s[{srdA}:{srdA+3}], s{sA1} offen offset:{off}")
        e(f"buffer_load_dwordx4 v[{b+8}:{b+11}], v{voff}, s[{srdB}:{srdB+3}], s{sB0} offen offset:{off}")
        e(f"buffer_load_dwordx4 v[{b+12}:{b+15}], v{voff}, s[{srdB}:{srdB+3}], s{sB1} offen offset:{off}")
        if s % 4 == 3:
            for sr in (sA0, sA1, sB0, sB1): e(f"s_add_u32 s{sr}, s{sr}, 4096")
    for s in range(DEPTH - 1): loads(s)
    for s in range(40):
        if s + DEPTH - 1 < 40:
            loads(s + DEPTH - 1)
            e(f"s_waitcnt vmcnt({4*(DEPTH-1)})")
        else:
            e(f"s_waitcnt vmcnt({4*(39-s)})")
        b = 128 + 16*(s % DEPTH)
        for ca in range(2):
            for pb in range(2):
                a = 64 + 16*(2*ca+pb)
                e(f"v_mfma_f32_32x32x16_bf16 v[{a}:{a+15}], v[{b+4*ca}:{b+4*ca+3}], v[{b+8+4*pb}:{b+8+4*pb+3}], v[{a}:{a+15}]")
    e("s_nop 15\ns_nop 3")

def gen_qkv(name, ws_uf):
    k = K(name); e = k.e
    k.lab(name)
    lend = name + "_end"
    e("s_cmp_ge_u32 s2, 352")
    e(f"s_cbranch_scc1 {lend}")
    k.stamp_init(); k.stamp(0, 100)
    e("s_load_dwordx2 s[6:7], s[0:1], 112")
    e("s_waitcnt lgkmcnt(0)")
    k.srd(8, 6, WS_WQKVT, WQKVT_BYTES)
    k.srd(12, 6, ws_uf, XT_BYTES)
    k.srd(16, 6, WS_Q, Q_BYTES)
    k.srd(20, 6, WS_KV, KV_BYTES)
    e("s_mul_i32 s3, s2, 47663")
    e("s_lshr_b32 s3, s3, 19")
    e("s_mul_i32 s4, s3, 11")
    e("s_sub_u32 s4, s2, s4")
    e("s_mul_i32 s24, s4, 81920")
    e("s_add_u32 s25, s24, 40960")
    e("s_mul_i32 s26, s3, 81920")
    e("s_add_u32 s27, s26, 40960")
    e("v_lshlrev_b32 v1, 4, v0")
    e("v_and_b32 v2, 31, v0")
    e("v_lshrrev_b32 v3, 5, v0")
    gemm_core(k, 8, 12, 24, 25, 26, 27, 1)
    k.stamp(1, 100)
    lkv = k.newlab("kv")
    e("s_cmp_eq_u32 s4, 10")
    e(f"s_cbranch_scc1 {lkv}")
    e(f"s_mov_b32 s30, {QSCALE:#x}")
    e("v_mul_u32_u24 v4, 1280, v2")
    e("v_lshl_add_u32 v4, v3, 3, v4")
    for ca in range(2):
        for pb in range(2):
            a = 64 + 16*(2*ca+pb)
            for r in range(16): e(f"v_mul_f32 v{a+r}, s30, v{a+r}")
            for j in range(8): e(f"v_cvt_pk_bf16_f32 v{8+j}, v{a+2*j}, v{a+2*j+1}")
            e("s_mul_i32 s28, s3, 81920")
            e("s_lshl_b32 s29, s4, 7")
            e("s_add_u32 s28, s28, s29")
            e(f"s_add_u32 s28, s28, {pb*40960 + ca*64}")
            for g in range(4):
                e(f"buffer_store_dwordx2 v[{8+2*g}:{9+2*g}], v4, s[16:19], s28 offen offset:{16*g}")
    e(f"s_branch {lend}")
    k.lab(lkv)
    for pb in range(2):
        e("s_lshl_b32 s31, s3, 1")
        if pb: e("s_add_u32 s31, s31, 1")
        e("s_bfe_u32 s34, s31, 0x20003")
        e("s_mul_i32 s34, s34, 40960")
        e("s_lshr_b32 s35, s31, 5")
        e("s_lshl_b32 s35, s35, 3")
        e("s_and_b32 s31, s31, 7")
        e("s_add_u32 s31, s31, s35")
        a = 64 + 16*pb
        for j in range(6): e(f"v_cvt_pk_bf16_f32 v{8+j}, v{a+2*j}, v{a+2*j+1}")
        e("v_lshlrev_b32 v4, 4, v2")
        e("v_lshl_add_u32 v4, v3, 3, v4")
        e("s_lshl_b32 s28, s31, 10")
        e("s_add_u32 s28, s28, s34")
        e("buffer_store_dwordx2 v[8:9], v4, s[20:23], s28 offen offset:0")
        e("buffer_store_dwordx2 v[10:11], v4, s[20:23], s28 offen offset:512")
        e("v_lshlrev_b32 v4, 3, v2")
        e("s_lshl_b32 s28, s31, 8")
        e("s_add_u32 s28, s28, 16384")
        e("s_add_u32 s28, s28, s34")
        e("v_cmp_eq_u32 vcc, 0, v3")
        e("s_and_saveexec_b64 s[32:33], vcc")
        e("buffer_store_dwordx2 v[12:13], v4, s[20:23], s28 offen")
        e("s_mov_b64 exec, s[32:33]")
        a = 64 + 32 + 16*pb
        for r in range(12): e(f"v_cvt_pk_bf16_f32 v{a+r}, v{a+r}, v{a+r}")
        e("v_lshrrev_b32 v4, 4, v2")
        e("v_mul_u32_u24 v4, 640, v4")
        e("v_bfe_u32 v5, v2, 2, 1")
        e("v_mul_u32_u24 v5, 320, v5")
        e("v_add_u32 v4, v4, v5")
        e("v_bfe_u32 v5, v2, 3, 1")
        e("v_lshl_add_u32 v4, v5, 3, v4")
        e("v_and_b32 v5, 3, v2")
        e("v_lshl_add_u32 v4, v5, 1, v4")
        e("v_lshl_add_u32 v4, v3, 6, v4")
        e("s_mul_i32 s28, s31, 1280")
        e("s_add_u32 s28, s28, 20480")
        e("s_add_u32 s28, s28, s34")
        for r in range(8):
            e(f"buffer_store_short v{a+r}, v4, s[20:23], s28 offen offset:{(8*(r>>2) + (r&3))*16}")
        e("v_cmp_eq_u32 vcc, 0, v3")
        e("s_and_saveexec_b64 s[32:33], vcc")
        for r in range(8, 12):
            e(f"buffer_store_short v{a+r}, v4, s[20:23], s28 offen offset:{(8*(r>>2) + (r&3))*16}")
        e("s_mov_b64 exec, s[32:33]")
    k.lab(lend)
    e("s_endpgm")
    return k

def gen_oproj(name, ws_xin, ws_xout, ws_stp, ws_stf, final):
    k = K(name); e = k.e
    k.lab(name)
    lend = name + "_end"
    e("s_cmp_ge_u32 s2, 320")
    e(f"s_cbranch_scc1 {lend}")
    k.stamp_init(); k.stamp(0, 100)
    e("s_load_dwordx2 s[6:7], s[0:1], 112")
    e("s_load_dwordx2 s[4:5], s[0:1], 96")
    e("s_load_dwordx2 s[44:45], s[0:1], 104")
    e("s_waitcnt lgkmcnt(0)")
    k.srd(8, 6, WS_WOT, WOT_BYTES)
    k.srd(12, 6, WS_O, Q_BYTES)
    k.srd(16, 6, ws_xin, XT_BYTES)
    if final: k.srd(20, 4, 0, XT_BYTES)
    else:
        k.srd(20, 6, ws_xout, XT_BYTES)
        k.srd(36, 6, ws_stp, 10*L*8)
        k.srd(40, 6, ws_stf, L*8)
        k.srd(48, 44, 0, 256)
    e("s_mul_i32 s3, s2, 52429")
    e("s_lshr_b32 s3, s3, 19")
    e("s_mul_i32 s34, s3, 10")
    e("s_sub_u32 s34, s2, s34")
    e("s_mul_i32 s24, s34, 81920")
    e("s_add_u32 s25, s24, 40960")
    e("s_mul_i32 s26, s3, 81920")
    e("s_add_u32 s27, s26, 40960")
    e("v_lshlrev_b32 v1, 4, v0")
    e("v_and_b32 v2, 31, v0")
    e("v_lshrrev_b32 v3, 5, v0")
    e("v_lshlrev_b32 v5, 14, v3")
    e("v_lshl_add_u32 v5, v2, 1, v5")
    e("s_lshl_b32 s33, s34, 18")
    e("s_lshl_b32 s35, s3, 7")
    e("s_add_u32 s33, s33, s35")
    e("v_lshlrev_b32 v6, 8, v3")
    e("v_lshl_add_u32 v6, v2, 1, v6")
    e("s_mul_i32 s35, s3, 81920")
    e("s_lshl_b32 s52, s34, 12")
    e("s_add_u32 s35, s35, s52")
    e("s_add_u32 s52, s35, 40960")
    for ca in range(2):
        for r in range(16):
            col = 32*ca + 8*(r>>2) + (r&3)
            e(f"buffer_load_ushort v{8+16*ca+r}, v6, s[16:19], s35 offen offset:{col*64}")
            e(f"buffer_load_ushort v{224+16*ca+r}, v6, s[16:19], s52 offen offset:{col*64}")
    gemm_core(k, 8, 12, 24, 25, 26, 27, 1, DEPTH=6)
    k.stamp(1, 100)
    for ca in range(2):
        for pb in range(2):
            a = 64 + 16*(2*ca+pb)
            for r in range(16):
                k.bfround(a+r)
                e(f"v_lshlrev_b32 v40, 16, v{(8 if pb == 0 else 224)+16*ca+r}")
                e(f"v_add_f32 v{a+r}, v{a+r}, v40")
    if final:
        e("v_mul_u32_u24 v4, 1280, v2")
        e("v_lshl_add_u32 v4, v3, 3, v4")
        for ca in range(2):
            for pb in range(2):
                a = 64 + 16*(2*ca+pb)
                for j in range(8): e(f"v_cvt_pk_bf16_f32 v{44+j}, v{a+2*j}, v{a+2*j+1}")
                e("s_mul_i32 s28, s3, 81920")
                e("s_lshl_b32 s29, s34, 7")
                e("s_add_u32 s28, s28, s29")
                e(f"s_add_u32 s28, s28, {pb*40960 + ca*64}")
                for g in range(4):
                    e(f"buffer_store_dwordx2 v[{44+2*g}:{45+2*g}], v4, s[20:23], s28 offen offset:{16*g}")
    else:
        for ca in range(2):
            for pb in range(2):
                a = 64 + 16*(2*ca+pb)
                for r in range(16):
                    col = 32*ca + 8*(r>>2) + (r&3)
                    e(f"v_cvt_pk_bf16_f32 v40, v{a+r}, v{a+r}")
                    e(f"s_add_u32 s35, s33, {col*4096}")
                    e(f"buffer_store_short v40, v5, s[20:23], s35 offen offset:{64*pb}")
                    e(f"v_lshlrev_b32 v{a+r}, 16, v40")
        for pb in range(2):
            a0 = 64 + 16*pb; a1 = 64 + 32 + 16*pb
            e(f"v_add_f32 v41, v{a0}, v{a1}")
            for r in range(1, 16):
                e(f"v_add_f32 v41, v41, v{a0+r}")
                e(f"v_add_f32 v41, v41, v{a1+r}")
            e("v_mov_b32 v42, v41\ns_nop 1\nv_permlane32_swap_b32 v41, v42\ns_nop 1\nv_add_f32 v41, v41, v42")
            e("v_mul_f32 v42, 0x3c800000, v41")
            e("v_mov_b32 v43, 0")
            for r in range(16):
                for aa in (a0, a1):
                    e(f"v_sub_f32 v40, v{aa+r}, v42")
                    e("v_fma_f32 v43, v40, v40, v43")
            e("v_mov_b32 v42, v43\ns_nop 1\nv_permlane32_swap_b32 v43, v42\ns_nop 1\nv_add_f32 v43, v43, v42")
            e(f"v_mov_b32 v{44+2*pb}, v41")
            e(f"v_mov_b32 v{45+2*pb}, v43")
        e("v_cmp_eq_u32 vcc, 0, v3")
        e("s_nop 1")
        e("v_cndmask_b32 v44, v46, v44, vcc")
        e("v_cndmask_b32 v45, v47, v45, vcc")
        e("v_lshlrev_b32 v4, 3, v0")
        e("s_lshl_b32 s28, s34, 14")
        e("s_lshl_b32 s29, s3, 9")
        e("s_add_u32 s28, s28, s29")
        e("buffer_store_dwordx2 v[44:45], v4, s[36:39], s28 offen sc1")
        e("s_waitcnt vmcnt(0)")
        e("v_mov_b32 v40, 1")
        e("s_lshl_b32 s28, s3, 2")
        e("v_mov_b32 v41, 0")
        e("s_mov_b64 s[30:31], exec")
        e("s_mov_b64 exec, 1")
        e("buffer_atomic_add v40, v41, s[48:51], s28 offen sc0 sc1")
        e("s_waitcnt vmcnt(0)")
        e("s_mov_b64 exec, s[30:31]")
        e("v_readfirstlane_b32 s28, v40")
        e("s_cmp_lg_u32 s28, 9")
        e(f"s_cbranch_scc1 {lend}")
        e("s_lshl_b32 s29, s3, 9")
        for g in range(10):
            e(f"s_add_u32 s28, s29, {g*16384}")
            e(f"buffer_load_dwordx2 v[{64+2*g}:{65+2*g}], v4, s[36:39], s28 offen sc1")
        e("s_waitcnt vmcnt(0)")
        e("v_add_f32 v40, v64, v66")
        for g in range(2, 10): e(f"v_add_f32 v40, v40, v{64+2*g}")
        e("v_mul_f32 v40, 0x3acccccd, v40")
        e("v_add_f32 v41, v65, v67")
        for g in range(2, 10): e(f"v_add_f32 v41, v41, v{65+2*g}")
        e("v_mov_b32 v42, 0")
        e("s_mov_b32 s28, 0x3c800000")
        for g in range(10):
            e(f"v_fma_f32 v43, v{64+2*g}, s28, -v40")
            e("v_fma_f32 v42, v43, v43, v42")
        e("s_mov_b32 s28, 0x42800000")
        e("v_fma_f32 v41, v42, s28, v41")
        e("v_mul_f32 v41, 0x3acccccd, v41")
        k.bfround(40); k.bfround(41)
        e("v_add_f32 v41, 0x3727c5ac, v41")
        k.bfround(41)
        e("v_sqrt_f32 v41, v41")
        e("s_nop 0")
        k.bfround(41)
        e("v_rcp_f32 v41, v41")
        e("s_nop 0")
        e("buffer_store_dwordx2 v[40:41], v4, s[40:43], s29 offen")
    k.lab(lend)
    e("s_endpgm")
    return k
```

```python
from gen_common import *
from gen_gemm import QSCALE
LQ_LDS = 40960 + 2048

def gen_lnqkv(name, ws_xin):
    k = K(name); e = k.e
    k.lab(name)
    lend = name + "_end"
    e("s_cmp_ge_u32 s2, 256")
    e(f"s_cbranch_scc1 {lend}")
    k.stamp_init(); k.stamp(0, 30)
    e("s_load_dwordx2 s[6:7], s[0:1], 112")
    e("v_lshrrev_b32 v1, 6, v0")
    e("s_nop 0")
    e("v_readfirstlane_b32 s40, v1")
    e("s_lshr_b32 s3, s2, 2")
    e("s_and_b32 s4, s2, 3")
    e("s_mul_i32 s41, s4, 6")
    e("s_cmp_eq_u32 s4, 3")
    e("s_cselect_b32 s42, 1, 0")
    e("s_sub_u32 s41, s41, s42")
    e("s_cmp_ge_u32 s4, 2")
    e("s_cselect_b32 s42, 5, 6")
    e("s_add_u32 s41, s41, s40")
    e("s_waitcnt lgkmcnt(0)")
    k.srd(8, 6, ws_xin, XT_BYTES)
    k.srd(12, 6, WS_WQKVT, WQKVT_BYTES)
    k.srd(16, 6, WS_Q, Q_BYTES)
    k.srd(20, 6, WS_KV, KV_BYTES)
    e("v_and_b32 v5, 3, v0")
    e("v_lshrrev_b32 v6, 2, v0")
    e("v_lshlrev_b32 v7, 4, v0")
    e("s_mul_i32 s26, s3, 40960")
    for i in range(5):
        e(f"s_add_u32 s27, s26, {i*8192}")
        e(f"buffer_load_dwordx4 v[{8+4*i}:{11+4*i}], v7, s[8:11], s27 offen")
    e("v_and_b32 v2, 63, v0")
    e("v_lshlrev_b32 v4, 4, v2")
    e("v_lshlrev_b32 v7, 6, v6")
    e("v_lshl_add_u32 v7, v5, 4, v7")
    for i in range(5):
        e(f"s_waitcnt vmcnt({4-i})")
        e(f"ds_write_b128 v7, v[{8+4*i}:{11+4*i}] offset:{i*8192}")
    e("v_bfe_u32 v3, v2, 5, 1")
    e("v_bfe_u32 v5, v2, 2, 2")
    e("v_lshl_add_u32 v5, v3, 3, v5")
    e("v_lshlrev_b32 v5, 6, v5")
    e("v_bfe_u32 v6, v2, 4, 1")
    e("v_lshl_add_u32 v5, v6, 5, v5")
    e("v_and_b32 v6, 3, v2")
    e("v_lshl_add_u32 v5, v6, 3, v5")
    e("v_mul_u32_u24 v6, 5120, v1")
    e("v_add_u32 v5, v5, v6")
    e("s_waitcnt lgkmcnt(0)")
    k.stamp(1, 30)
    e("s_barrier")
    e("s_mul_i32 s27, s41, 40960")
    def abatch(b):
        lna = k.newlab("noa")
        e("s_cmp_ge_u32 s40, s42")
        e(f"s_cbranch_scc1 {lna}")
        for s in range(8*b, 8*b+8):
            e(f"buffer_load_dwordx4 v[{96+4*s}:{99+4*s}], v4, s[12:15], s27 offen offset:{(s%4)*1024}")
            if s % 4 == 3: e("s_add_u32 s27, s27, 4096")
        k.lab(lna)
    for s in range(5):
        e(f"ds_read_b64_tr_b16 v[{8+4*s}:{9+4*s}], v5 offset:{s*1024}")
        e(f"ds_read_b64_tr_b16 v[{10+4*s}:{11+4*s}], v5 offset:{s*1024+256}")
    abatch(0)
    e("s_waitcnt lgkmcnt(0)")
    for j in range(20):
        e(f"v_lshlrev_b32 v{32+2*j}, 16, v{8+j}")
        e(f"v_and_b32 v{33+2*j}, 0xffff0000, v{8+j}")
    def wgsum(src, off, bt):
        e(f"v_mov_b32 v73, v{src}")
        e("s_nop 1")
        e(f"v_permlane32_swap_b32 v{src}, v73")
        e("s_nop 1")
        e(f"v_add_f32 v{src}, v{src}, v73")
        e("v_and_b32 v74, 31, v0")
        e("v_lshlrev_b32 v75, 7, v1")
        e("v_lshl_add_u32 v75, v74, 2, v75")
        e(f"ds_write_b32 v75, v{src} offset:{off}")
        abatch(bt)
        e("s_waitcnt lgkmcnt(0)")
        e("s_barrier")
        e("v_lshlrev_b32 v75, 2, v74")
        for w in range(8): e(f"ds_read_b32 v{76+w}, v75 offset:{off + 128*w}")
        e("s_waitcnt lgkmcnt(0)")
        e("v_add_f32 v76, v76, v77\nv_add_f32 v78, v78, v79\nv_add_f32 v80, v80, v81\nv_add_f32 v82, v82, v83")
        e("v_add_f32 v76, v76, v78\nv_add_f32 v80, v80, v82")
        e(f"v_add_f32 v{src}, v76, v80")
    for c in range(4): e(f"v_add_f32 v{84+c}, v{32+c}, v{36+c}")
    for j in range(8, 40, 4):
        for c in range(4): e(f"v_add_f32 v{84+c}, v{84+c}, v{32+j+c}")
    e("v_add_f32 v84, v84, v85\nv_add_f32 v86, v86, v87\nv_add_f32 v72, v84, v86")
    wgsum(72, 40960, 1)
    abatch(2)
    e("v_mul_f32 v72, 0x3acccccd, v72")
    for c in range(4): e(f"v_mov_b32 v{84+c}, 0")
    for j in range(40):
        e(f"v_sub_f32 v{88+(j&3)}, v{32+j}, v72")
        e(f"v_fma_f32 v{84+(j&3)}, v{88+(j&3)}, v{88+(j&3)}, v{84+(j&3)}")
    e("v_add_f32 v84, v84, v85\nv_add_f32 v86, v86, v87\nv_add_f32 v89, v84, v86")
    wgsum(89, 40960 + 1024, 3)
    abatch(4)
    e("v_mul_f32 v89, 0x3acccccd, v89")
    k.bfround(89); k.bfround(72)
    e("v_add_f32 v89, 0x3727c5ac, v89")
    k.bfround(89)
    e("v_sqrt_f32 v89, v89")
    e("s_nop 0")
    k.bfround(89)
    e("v_rcp_f32 v89, v89")
    e("s_nop 0")
    for j in range(40):
        e(f"v_sub_f32 v{32+j}, v{32+j}, v72")
    for j in range(20):
        e(f"v_cvt_pk_bf16_f32 v{8+j}, v{32+2*j}, v{33+2*j}")
    for j in range(20):
        e(f"v_lshlrev_b32 v{32+2*j}, 16, v{8+j}")
        e(f"v_and_b32 v{33+2*j}, 0xffff0000, v{8+j}")
    for j in range(40):
        e(f"v_mul_f32 v{32+j}, v{32+j}, v89")
    for j in range(20):
        e(f"v_cvt_pk_bf16_f32 v{8+j}, v{32+2*j}, v{33+2*j}")
    e("v_mul_u32_u24 v6, 5120, v1")
    e("v_add_u32 v6, v6, v4")
    for s in range(5):
        e(f"ds_write_b128 v6, v[{8+4*s}:{11+4*s}] offset:{s*1024}")
    e("s_waitcnt lgkmcnt(0)")
    k.stamp(2, 30)
    e("s_barrier")
    e("s_cmp_ge_u32 s40, s42")
    e(f"s_cbranch_scc1 {lend}")
    for r in range(32): e(f"v_mov_b32 v{56+r}, 0")
    NB = 6
    def ldb(s): e(f"ds_read_b128 v[{8+4*(s%NB)}:{11+4*(s%NB)}], v4 offset:{s*1024}")
    for s in range(NB-1): ldb(s)
    for s in range(40):
        if s + NB - 1 < 40:
            ldb(s + NB - 1)
            e(f"s_waitcnt vmcnt({39-s}) lgkmcnt({NB-1})")
        else:
            e(f"s_waitcnt vmcnt({39-s}) lgkmcnt({39-s})")
        a = 56 + 16*(s & 1); b = 8 + 4*(s % NB)
        e(f"v_mfma_f32_32x32x16_bf16 v[{a}:{a+15}], v[{96+4*s}:{99+4*s}], v[{b}:{b+3}], v[{a}:{a+15}]")
    e("s_nop 15\ns_nop 3")
    for r in range(16): e(f"v_add_f32 v{56+r}, v{56+r}, v{72+r}")
    k.stamp(3, 30)
    a = 56
    e("v_and_b32 v2, 31, v0")
    lk = k.newlab("k"); lv = k.newlab("v")
    e("s_cmp_eq_u32 s41, 20")
    e(f"s_cbranch_scc1 {lk}")
    e("s_cmp_eq_u32 s41, 21")
    e(f"s_cbranch_scc1 {lv}")
    e(f"s_mov_b32 s30, {QSCALE:#x}")
    e("v_mul_u32_u24 v4, 1280, v2")
    e("v_lshl_add_u32 v4, v3, 3, v4")
    for r in range(16): e(f"v_mul_f32 v{a+r}, s30, v{a+r}")
    for j in range(8): e(f"v_cvt_pk_bf16_f32 v{8+j}, v{a+2*j}, v{a+2*j+1}")
    e("s_mul_i32 s28, s3, 40960")
    e("s_lshl_b32 s29, s41, 6")
    e("s_add_u32 s28, s28, s29")
    for g in range(4):
        e(f"buffer_store_dwordx2 v[{8+2*g}:{9+2*g}], v4, s[16:19], s28 offen offset:{16*g}")
    e("s_endpgm")
    def tileaddr():
        e("s_bfe_u32 s34, s3, 0x20003")
        e("s_mul_i32 s34, s34, 40960")
        e("s_lshr_b32 s35, s3, 5")
        e("s_lshl_b32 s35, s35, 3")
        e("s_and_b32 s31, s3, 7")
        e("s_add_u32 s31, s31, s35")
    k.lab(lk)
    tileaddr()
    for j in range(6): e(f"v_cvt_pk_bf16_f32 v{8+j}, v{a+2*j}, v{a+2*j+1}")
    e("v_lshlrev_b32 v4, 4, v2")
    e("v_lshl_add_u32 v4, v3, 3, v4")
    e("s_lshl_b32 s28, s31, 10")
    e("s_add_u32 s28, s28, s34")
    e("buffer_store_dwordx2 v[8:9], v4, s[20:23], s28 offen offset:0")
    e("buffer_store_dwordx2 v[10:11], v4, s[20:23], s28 offen offset:512")
    e("v_lshlrev_b32 v4, 3, v2")
    e("s_lshl_b32 s28, s31, 8")
    e("s_add_u32 s28, s28, 16384")
    e("s_add_u32 s28, s28, s34")
    e("v_cmp_eq_u32 vcc, 0, v3")
    e("s_and_saveexec_b64 s[32:33], vcc")
    e("buffer_store_dwordx2 v[12:13], v4, s[20:23], s28 offen")
    e("s_endpgm")
    k.lab(lv)
    tileaddr()
    for r in range(12): e(f"v_cvt_pk_bf16_f32 v{a+r}, v{a+r}, v{a+r}")
    e("v_lshrrev_b32 v4, 4, v2")
    e("v_mul_u32_u24 v4, 640, v4")
    e("v_bfe_u32 v5, v2, 2, 1")
    e("v_mul_u32_u24 v5, 320, v5")
    e("v_add_u32 v4, v4, v5")
    e("v_bfe_u32 v5, v2, 3, 1")
    e("v_lshl_add_u32 v4, v5, 3, v4")
    e("v_and_b32 v5, 3, v2")
    e("v_lshl_add_u32 v4, v5, 1, v4")
    e("v_lshl_add_u32 v4, v3, 6, v4")
    e("s_mul_i32 s28, s31, 1280")
    e("s_add_u32 s28, s28, 20480")
    e("s_add_u32 s28, s28, s34")
    for r in range(8):
        e(f"buffer_store_short v{a+r}, v4, s[20:23], s28 offen offset:{(8*(r>>2) + (r&3))*16}")
    e("v_cmp_eq_u32 vcc, 0, v3")
    e("s_and_saveexec_b64 s[32:33], vcc")
    for r in range(8, 12):
        e(f"buffer_store_short v{a+r}, v4, s[20:23], s28 offen offset:{(8*(r>>2) + (r&3))*16}")
    k.lab(lend)
    e("s_endpgm")
    return k
```

```python
from gen_common import *
PREP_GRID = 824
PREP_LDS = 21504

def gen_prep():
    k = K("prep_kernel")
    e = k.e
    k.lab("prep_kernel")
    L_kgen = "prep_kgen"; L_tile = "prep_tile"; L_kv = "prep_kv"; L_end = "prep_end"; L_x0 = "prep_x0"
    e("s_load_dwordx16 s[16:31], s[0:1], 0")
    e("s_load_dwordx8 s[32:39], s[0:1], 64")
    e("s_load_dwordx2 s[40:41], s[0:1], 112")
    e("s_cmp_ge_u32 s2, 824")
    e(f"s_cbranch_scc1 {L_end}")
    e("s_sub_u32 s3, s2, 184")
    e("s_add_u32 s4, s2, 640")
    e("s_cmp_lt_u32 s2, 184")
    e("s_cselect_b32 s2, s4, s3")
    e("s_waitcnt lgkmcnt(0)")
    e("s_cmp_lt_u32 s2, 640")
    e(f"s_cbranch_scc1 {L_kgen}")
    e("s_cmp_lt_u32 s2, 740")
    e(f"s_cbranch_scc1 {L_tile}")
    e("s_cmp_lt_u32 s2, 804")
    e(f"s_cbranch_scc1 {L_x0}")
    e("s_cmp_lt_u32 s2, 824")
    e(f"s_cbranch_scc1 {L_kv}")
    e("s_endpgm")

    k.lab(L_kgen)
    k.stamp_init(); k.stamp(0, 300)
    k.srd(44, 18, 0, 640*128*2)
    k.srd(48, 20, 0, 640*128*2)
    k.srd(52, 22, 0, 640*128*2)
    k.srd(56, 24, 0, 640*128*2)
    k.srd(60, 26, 0, 640*2)
    k.srd(64, 40, WS_KR, KR_BYTES)
    e("s_lshl_b32 s3, s2, 8")
    e("s_lshl_b32 s4, s2, 1")
    e("v_and_b32 v1, 127, v0")
    e("v_lshlrev_b32 v1, 1, v1")
    e("v_mov_b32 v2, 0")
    e("buffer_load_ushort v4, v1, s[44:47], s3 offen")
    e("buffer_load_ushort v5, v1, s[48:51], s3 offen")
    e("buffer_load_ushort v6, v1, s[52:55], s3 offen")
    e("buffer_load_ushort v7, v1, s[56:59], s3 offen")
    e("buffer_load_ushort v8, v2, s[60:63], s4 offen")
    e("s_mov_b32 s5, 0x3fb8aa3b")
    e("s_mov_b32 s6, 0x3e22f983")
    e("s_waitcnt vmcnt(0)")
    k.stamp(1, 300)
    for r in (4,5,6,7,8): e(f"v_lshlrev_b32 v{r}, 16, v{r}")
    e("v_mul_f32 v8, s5, v8")
    e("v_exp_f32 v8, v8")
    e("v_mul_f32 v4, s5, v4")
    e("v_exp_f32 v4, v4")
    e("s_nop 1")
    k.bfround(8); k.bfround(4)
    e("v_mul_f32 v10, v4, v8")
    e("v_mul_f32 v11, v5, v8")
    e("v_mul_f32 v12, v6, v8")
    e("v_mul_f32 v13, v7, v8")
    e("v_mul_f32 v10, s5, v10")
    e("v_sub_f32 v10, 0, v10")
    e("v_mul_f32 v11, s6, v11")
    e("v_add_f32 v12, v12, v12")
    e("v_add_f32 v13, v13, v13")
    e("v_lshlrev_b32 v1, 3, v1")
    e("ds_write_b128 v1, v[10:13]")
    e("v_and_b32 v2, 15, v0")
    e("v_cvt_f32_u32 v20, v2")
    e("v_lshlrev_b32 v3, 4, v2")
    e("v_cvt_f32_u32 v21, v3")
    e("v_cmp_gt_u32 vcc, 8, v2")
    e("v_lshlrev_b32 v3, 5, v2")
    e("v_add_u32 v3, 256, v3")
    e("v_lshlrev_b32 v4, 6, v2")
    e("v_cndmask_b32 v3, v4, v3, vcc")
    e("v_cvt_f32_u32 v22, v3")
    e("v_lshlrev_b32 v3, 7, v2")
    e("v_add_u32 v3, 1024, v3")
    e("v_mov_b32 v4, 2048")
    e("v_cndmask_b32 v3, v4, v3, vcc")
    e("v_cvt_f32_u32 v23, v3")
    e("v_lshrrev_b32 v3, 6, v0")
    e("v_lshlrev_b32 v3, 9, v3")
    e("v_bfe_u32 v4, v0, 4, 2")
    e("v_lshl_add_u32 v9, v4, 4, v3")
    for r in range(16): e(f"v_mov_b32 v{96+r}, 0")
    e("s_waitcnt lgkmcnt(0)")
    e("s_barrier")
    k.stamp(2, 300)
    for j in range(8):
        e(f"ds_read_b128 v[{64+4*j}:{67+4*j}], v9 offset:{64*j}")
    for j in range(8):
        P = 64 + 4*j
        e(f"s_waitcnt lgkmcnt({7-j})")
        for q in range(4):
            e(f"v_mul_f32 v{30+q}, v{P}, v{20+q}")
            e(f"v_mul_f32 v{34+q}, v{P+1}, v{20+q}")
        for q in range(4):
            e(f"v_exp_f32 v{30+q}, v{30+q}")
            e(f"v_fract_f32 v{34+q}, v{34+q}")
        for q in range(4):
            e(f"v_cos_f32 v{38+q}, v{34+q}")
            e(f"v_sin_f32 v{34+q}, v{34+q}")
        e("s_nop 0")
        e("v_mul_f32 v44, v30, v38")
        e("v_mul_f32 v45, v30, v34")
        for q in range(1, 4):
            ar = 52 + 2*(q-1)
            e(f"v_mul_f32 v{ar}, v{P+2}, v{38+q}")
            e(f"v_mul_f32 v{ar+1}, v{P+3}, v{38+q}")
        for q in range(1, 4):
            ar = 52 + 2*(q-1)
            e(f"v_fma_f32 v{ar}, -v{P+3}, v{34+q}, v{ar}")
            e(f"v_fma_f32 v{ar+1}, v{P+2}, v{34+q}, v{ar+1}")
        for q in range(1, 4):
            ar = 52 + 2*(q-1)
            e(f"v_mul_f32 v{ar}, v{30+q}, v{ar}")
            e(f"v_mul_f32 v{ar+1}, -v{30+q}, v{ar+1}")
        for lv in range(3):
            a = 44 + 2*lv
            e(f"v_mul_f32 v{a+2}, v{a}, v{a}")
            e(f"v_add_f32 v{a+3}, v{a+1}, v{a+1}")
            e(f"v_fma_f32 v{a+2}, -v{a+1}, v{a+1}, v{a+2}")
            e(f"v_mul_f32 v{a+3}, v{a+3}, v{a}")
        e("s_nop 1")
        for c in range(2):
            e(f"v_mfma_f32_16x16x4_f32 v[96:99], v{52+c}, v{44+c}, v[96:99]")
            e(f"v_mfma_f32_16x16x4_f32 v[100:103], v{54+c}, v{46+c}, v[100:103]")
            e(f"v_mfma_f32_16x16x4_f32 v[104:107], v{54+c}, v{48+c}, v[104:107]")
            e(f"v_mfma_f32_16x16x4_f32 v[108:111], v{56+c}, v{50+c}, v[108:111]")
    e("s_nop 15")
    k.stamp(3, 300)
    e("v_and_b32 v2, 63, v0")
    e("v_cmp_gt_u32 vcc, 32, v2")
    for r in range(4): e(f"v_cndmask_b32 v{100+r}, v{104+r}, v{100+r}, vcc")
    e("v_lshrrev_b32 v3, 6, v0")
    e("v_mul_u32_u24 v3, 3072, v3")
    e("v_bfe_u32 v4, v0, 4, 2")
    e("v_lshl_add_u32 v3, v4, 8, v3")
    e("v_and_b32 v4, 15, v0")
    e("v_lshl_add_u32 v3, v4, 2, v3")
    for r in range(4):
        e(f"ds_write_b32 v3, v{96+r} offset:{4096 + 64*r}")
        e(f"ds_write_b32 v3, v{100+r} offset:{4096 + 1024 + 64*r}")
        e(f"ds_write_b32 v3, v{108+r} offset:{4096 + 2048 + 64*r}")
    e("s_waitcnt lgkmcnt(0)")
    e("s_barrier")
    e("v_lshlrev_b32 v1, 2, v0")
    for c in range(3):
        for w in range(4):
            e(f"ds_read_b32 v{24+4*c+w}, v1 offset:{4096 + 3072*w + 1024*c}")
    e("s_waitcnt lgkmcnt(0)")
    for c in range(3):
        e(f"v_add_f32 v{24+4*c}, v{24+4*c}, v{25+4*c}")
        e(f"v_add_f32 v{26+4*c}, v{26+4*c}, v{27+4*c}")
        e(f"v_add_f32 v{24+4*c}, v{24+4*c}, v{26+4*c}")
    for c in range(3):
        e(f"ds_write_b32 v1, v{24+4*c} offset:{16384 + 1024*c}")
    e("s_waitcnt lgkmcnt(0)")
    e("s_barrier")
    k.stamp(4, 300)
    e("v_lshlrev_b32 v1, 3, v0")
    for i in range(8):
        a = 40 + i
        e(f"v_sub_u32 v{a}, {2047 - i}, v1")
        e(f"v_cvt_f32_u32 v2, v{a}")
        e("v_cvt_pk_bf16_f32 v2, v2, v2")
        e("v_and_b32 v2, 0xffff, v2")
        e(f"v_add_u32 v2, {256 - 17280}, v2")
        e(f"v_cmp_gt_u32 vcc, 256, v{a}")
        e("s_nop 1")
        e(f"v_cndmask_b32 v{a}, v2, v{a}, vcc")
        e(f"v_lshlrev_b32 v{a}, 2, v{a}")
    for i in range(8):
        e(f"ds_read_b32 v{40+i}, v{40+i} offset:16384")
    e("s_waitcnt lgkmcnt(0)")
    for i in range(4):
        e(f"v_cvt_pk_bf16_f32 v{48+i}, v{40+2*i}, v{41+2*i}")
    e(f"s_mul_i32 s8, s2, {KRL*2}")
    e("v_lshlrev_b32 v1, 4, v0")
    e("buffer_store_dwordx4 v[48:51], v1, s[64:67], s8 offen")
    k.stamp(5, 300)
    e("v_mov_b32 v52, 0\nv_mov_b32 v53, 0\nv_mov_b32 v54, 0\nv_mov_b32 v55, 0")
    e("v_cmp_gt_u32 vcc, 8, v0")
    e("s_and_saveexec_b64 s[10:11], vcc")
    e(f"s_cbranch_execz {L_end}")
    e("s_add_u32 s8, s8, 4096")
    e("buffer_store_dwordx4 v[52:55], v1, s[64:67], s8 offen")
    e(f"s_branch {L_end}")

    k.lab(L_tile)
    lq = k.newlab("tq"); lgo = k.newlab("tgo")
    e("s_cmp_lt_u32 s2, 690")
    e(f"s_cbranch_scc1 {lq}")
    k.srd(44, 38, 0, 640*1280); k.srd(48, 40, WS_WOT, WOT_BYTES)
    e("s_sub_u32 s13, s2, 690")
    e(f"s_branch {lgo}")
    k.lab(lq)
    k.srd(44, 32, 0, 640*1280); k.srd(48, 40, WS_WQKVT, WQKVT_BYTES)
    e("s_sub_u32 s13, s2, 640")
    k.lab(lgo)
    e("s_mul_i32 s3, s13, 52429")
    e("s_lshr_b32 s3, s3, 18")
    e("s_mul_i32 s4, s3, 5")
    e("s_sub_u32 s4, s13, s4")
    e("s_mul_i32 s5, s3, 81920")
    e("s_lshl_b32 s6, s4, 8")
    e("s_add_u32 s5, s5, s6")
    e("s_mul_i32 s6, s4, 163840")
    e("s_lshl_b32 s7, s3, 12")
    e("s_add_u32 s6, s6, s7")
    e("v_lshrrev_b32 v1, 4, v0")
    e("v_and_b32 v2, 15, v0")
    e("v_mul_u32_u24 v3, 1280, v1")
    e("v_lshl_add_u32 v3, v2, 4, v3")
    e("v_mul_u32_u24 v4, 272, v1")
    e("v_lshl_add_u32 v4, v2, 4, v4")
    for i in range(4):
        e(f"s_add_u32 s8, s5, {i*16*1280}")
        e(f"buffer_load_dwordx4 v[{8+4*i}:{11+4*i}], v3, s[44:47], s8 offen")
    e("s_waitcnt vmcnt(0)")
    for i in range(4):
        e(f"ds_write_b128 v4, v[{8+4*i}:{11+4*i}] offset:{i*16*272}")
    e("s_waitcnt lgkmcnt(0)")
    e("s_barrier")
    e("v_lshrrev_b32 v1, 6, v0")
    e("v_bfe_u32 v2, v0, 4, 2")
    e("v_and_b32 v3, 15, v0")
    e("v_lshrrev_b32 v4, 2, v3")
    e("v_and_b32 v5, 3, v3")
    e("v_lshl_add_u32 v6, v1, 4, v4")
    e("v_mul_u32_u24 v6, 272, v6")
    e("v_lshlrev_b32 v7, 5, v2")
    e("v_lshl_add_u32 v7, v5, 3, v7")
    e("v_add_u32 v6, v6, v7")
    for it in range(4):
        off = (it & 1) * 8 * 272 + (it >> 1) * 128
        e(f"ds_read_b64_tr_b16 v[{8+4*it}:{9+4*it}], v6 offset:{off}")
        e(f"ds_read_b64_tr_b16 v[{10+4*it}:{11+4*it}], v6 offset:{off + 4*272}")
    e("v_lshrrev_b32 v7, 1, v2")
    e("v_mul_u32_u24 v7, 40960, v7")
    e("v_lshl_add_u32 v7, v1, 10, v7")
    e("v_and_b32 v5, 31, v0")
    e("v_lshl_add_u32 v7, v5, 4, v7")
    e("s_add_u32 s9, s6, 81920")
    e("s_waitcnt lgkmcnt(0)")
    for it in range(4):
        so = "s6" if (it >> 1) == 0 else "s9"
        e(f"buffer_store_dwordx4 v[{8+4*it}:{11+4*it}], v7, s[48:51], {so} offen offset:{(it&1)*512}")
    e(f"s_branch {L_end}")

    k.lab(L_x0)
    XS = 672
    k.srd(44, 16, 0, XT_BYTES); k.srd(48, 40, WS_XT0, XT_BYTES); k.srd(52, 40, WS_STF0, STF_BYTES)
    e("s_sub_u32 s13, s2, 740")
    e("s_mul_i32 s5, s13, 40960")
    e("v_lshrrev_b32 v1, 3, v0")
    e("v_and_b32 v2, 7, v0")
    e("v_mul_u32_u24 v3, 1280, v1")
    e("v_lshl_add_u32 v3, v2, 4, v3")
    e(f"v_mul_u32_u24 v4, {XS}, v1")
    e("v_lshl_add_u32 v4, v2, 4, v4")
    for i in range(10):
        e(f"buffer_load_dwordx4 v[{8+4*i}:{11+4*i}], v3, s[44:47], s5 offen offset:{128*i}")
    for i in range(5):
        e(f"s_waitcnt vmcnt({9-i})")
        e(f"ds_write_b128 v4, v[{8+4*i}:{11+4*i}] offset:{128*i}")
    e("s_waitcnt vmcnt(0)")
    def red8(v):
        e("s_nop 1")
        e(f"v_add_f32_dpp v{v}, v{v}, v{v} quad_perm:[1,0,3,2] row_mask:0xf bank_mask:0xf")
        e("s_nop 1")
        e(f"v_add_f32_dpp v{v}, v{v}, v{v} quad_perm:[2,3,0,1] row_mask:0xf bank_mask:0xf")
        e("s_nop 1")
        e(f"v_add_f32_dpp v{v}, v{v}, v{v} row_half_mirror row_mask:0xf bank_mask:0xf")
    e("v_mov_b32 v50, 0\nv_mov_b32 v51, 0\nv_mov_b32 v52, 0\nv_mov_b32 v53, 0")
    for j in range(40):
        e(f"v_lshlrev_b32 v54, 16, v{8+j}")
        e(f"v_and_b32 v55, 0xffff0000, v{8+j}")
        e(f"v_add_f32 v{50+2*(j&1)}, v{50+2*(j&1)}, v54")
        e(f"v_add_f32 v{51+2*(j&1)}, v{51+2*(j&1)}, v55")
    e("v_add_f32 v50, v50, v51\nv_add_f32 v52, v52, v53\nv_add_f32 v56, v50, v52")
    red8(56)
    e("v_mul_f32 v56, 0x3acccccd, v56")
    e("v_mov_b32 v50, 0\nv_mov_b32 v51, 0\nv_mov_b32 v52, 0\nv_mov_b32 v53, 0")
    for j in range(40):
        e(f"v_lshlrev_b32 v54, 16, v{8+j}")
        e(f"v_and_b32 v55, 0xffff0000, v{8+j}")
        e("v_sub_f32 v54, v54, v56")
        e("v_sub_f32 v55, v55, v56")
        e(f"v_fma_f32 v{50+2*(j&1)}, v54, v54, v{50+2*(j&1)}")
        e(f"v_fma_f32 v{51+2*(j&1)}, v55, v55, v{51+2*(j&1)}")
    e("v_add_f32 v50, v50, v51\nv_add_f32 v52, v52, v53\nv_add_f32 v57, v50, v52")
    red8(57)
    e("v_mul_f32 v57, 0x3acccccd, v57")
    k.bfround(56); k.bfround(57)
    e("v_add_f32 v57, 0x3727c5ac, v57")
    k.bfround(57)
    e("v_sqrt_f32 v57, v57")
    e("s_nop 0")
    k.bfround(57)
    e("v_rcp_f32 v57, v57")
    e("s_lshl_b32 s8, s13, 8")
    e("v_lshlrev_b32 v5, 3, v1")
    e("v_cmp_eq_u32 vcc, 0, v2")
    e("s_and_saveexec_b64 s[10:11], vcc")
    e("buffer_store_dwordx2 v[56:57], v5, s[52:55], s8 offen")
    e("s_mov_b64 exec, s[10:11]")
    e("v_lshrrev_b32 v1, 6, v0")
    e("v_bfe_u32 v2, v0, 4, 2")
    e("v_and_b32 v3, 15, v0")
    e("v_lshrrev_b32 v5, 2, v3")
    e("v_lshl_add_u32 v6, v2, 3, v5")
    e("v_and_b32 v5, 3, v3")
    e(f"v_mul_u32_u24 v6, {XS}, v6")
    e("v_lshl_add_u32 v6, v1, 5, v6")
    e("v_lshl_add_u32 v6, v5, 3, v6")
    e("v_lshl_add_u32 v7, v1, 4, v3")
    e("v_lshlrev_b32 v7, 12, v7")
    e("v_lshl_add_u32 v7, v2, 4, v7")
    e("s_lshl_b32 s6, s13, 6")
    for half in range(2):
        e("s_waitcnt lgkmcnt(0)")
        e("s_barrier")
        for it in range(5):
            e(f"ds_read_b64_tr_b16 v[{60+4*it}:{61+4*it}], v6 offset:{128*it}")
            e(f"ds_read_b64_tr_b16 v[{62+4*it}:{63+4*it}], v6 offset:{128*it + 4*XS}")
        for it in range(5):
            e(f"s_waitcnt lgkmcnt({2*(4-it)})")
            e(f"buffer_store_dwordx4 v[{60+4*it}:{63+4*it}], v7, s[48:51], s6 offen")
            e(f"s_add_u32 s6, s6, {64*4096}")
        if half == 0:
            e("s_barrier")
            for i in range(5, 10):
                e(f"ds_write_b128 v4, v[{8+4*i}:{11+4*i}] offset:{128*(i-5)}")
            e("s_waitcnt vmcnt(0)")
    e(f"s_branch {L_end}")

    k.lab(L_kv)
    lv = k.newlab("kvv"); lg2 = k.newlab("kvg")
    e("s_sub_u32 s13, s2, 804")
    e("s_cmp_lt_u32 s13, 10")
    e(f"s_cbranch_scc0 {lv}")
    k.srd(44, 34, 0, 640*40)
    e(f"s_branch {lg2}")
    k.lab(lv)
    k.srd(44, 36, 0, 640*40)
    k.lab(lg2)
    k.srd(52, 40, WS_WQKVT, WQKVT_BYTES)
    e("s_sub_u32 s4, s13, 10")
    e("s_cmp_lt_u32 s13, 10")
    e("s_cselect_b32 s3, s13, s4")
    e("s_mul_i32 s5, s3, 2560")
    e("v_lshrrev_b32 v1, 5, v0")
    e("v_and_b32 v2, 31, v0")
    e("v_mul_u32_u24 v3, 320, v1")
    e("v_lshl_add_u32 v3, v2, 1, v3")
    for i in range(8): e(f"v_mov_b32 v{12+i}, 0")
    e("v_cmp_gt_u32 vcc, 20, v2")
    e("s_and_saveexec_b64 s[10:11], vcc")
    for i in range(8):
        e(f"buffer_load_ushort v{12+i}, v3, s[44:47], s5 offen offset:{40*i}")
    e("s_mov_b64 exec, s[10:11]")
    e("s_lshl_b32 s6, s13, 12")
    e(f"s_add_u32 s6, s6, {20*40960}")
    e("v_lshlrev_b32 v4, 4, v0")
    e("s_waitcnt vmcnt(0)")
    for i in range(4): e(f"v_lshl_or_b32 v{8+i}, v{13+2*i}, 16, v{12+2*i}")
    e("buffer_store_dwordx4 v[8:11], v4, s[52:55], s6 offen")
    k.lab(L_end)
    e("s_endpgm")
    return k
```

```python
from gen_common import *
from gen_conv import gen_conv, CONV_LDS
from gen_lnqkv import gen_lnqkv, LQ_LDS
from gen_oproj import gen_oproj, OP_LDS
from gen_attn import gen_attn, ATT_LDS, ATT_VGPR
def kernels():
    ks = []
    att = gen_attn("attn_kernel")
    ks.append((gen_conv("conv1_kernel", WS_XT0, WS_XT1, WS_STF0), 160, 640, 256, CONV_LDS))
    ks.append((gen_lnqkv("lnqkv1_kernel", WS_XT1), 256, 256, 512, LQ_LDS))
    ks.append((att, ATT_VGPR, 256, 512, ATT_LDS))
    ks.append((gen_oproj("oproj1_kernel", WS_XT1, WS_XT2, WS_STP, WS_STF1, False), 256, 256, 320, OP_LDS))
    ks.append((gen_conv("conv2_kernel", WS_XT2, WS_XT3, WS_STF1), 160, 640, 256, CONV_LDS))
    ks.append((gen_lnqkv("lnqkv2_kernel", WS_XT3), 256, 256, 512, LQ_LDS))
    ks.append((att, ATT_VGPR, 256, 512, ATT_LDS))
    ks.append((gen_oproj("oproj2_kernel", WS_XT3, None, None, None, True), 256, 256, 320, OP_LDS))
    return ks
```

```python
from gen_common import *

CSTR = 4416
C_KR = 0
C_P = 0
C_U = 35328
CONV_LDS = 42944

def gen_conv(name, ws_xin, ws_xout, ws_stf):
    k = K(name); e = k.e
    k.lab(name)
    lend = name + "_end"
    e("s_cmp_ge_u32 s2, 640")
    e(f"s_cbranch_scc1 {lend}")
    k.stamp_init(); k.stamp(0, 300)
    e("s_load_dwordx2 s[4:5], s[0:1], 48")
    e("s_load_dwordx2 s[6:7], s[0:1], 112")
    e("s_waitcnt lgkmcnt(0)")
    k.srd(8, 6, ws_xin, XT_BYTES)
    k.srd(12, 6, ws_xout, XT_BYTES)
    k.srd(16, 6, ws_stf, L*8)
    k.srd(20, 6, WS_KR, KR_BYTES)
    k.srd(24, 4, 0, 1280)
    e("s_lshl_b32 s28, s2, 12")
    e(f"s_mul_i32 s29, s2, {KRL*2}")
    e("s_lshl_b32 s30, s2, 1")
    e("v_lshlrev_b32 v1, 4, v0")
    e("v_lshlrev_b32 v2, 6, v0")
    e("v_mov_b32 v3, 0")
    e("buffer_load_dwordx4 v[32:35], v1, s[20:23], s29 offen")
    e("buffer_load_dwordx4 v[36:39], v1, s[20:23], s29 offen offset:16")
    e("buffer_load_dwordx4 v[4:7], v1, s[8:11], s28 offen")
    for q in range(4):
        e(f"buffer_load_dwordx4 v[{96+4*q}:{99+4*q}], v2, s[16:19], 0 offen offset:{16*q}")
    e("buffer_load_ushort v13, v3, s[24:27], s30 offen")
    e("v_mov_b32 v20, 0\nv_mov_b32 v21, 0\nv_mov_b32 v22, 0\nv_mov_b32 v23, 0")
    e("v_cmp_gt_u32 vcc, 155, v0")
    e("s_and_saveexec_b64 s[32:33], vcc")
    e(f"ds_write_b128 v1, v[20:23] offset:{C_U}")
    e("s_mov_b64 exec, s[32:33]")
    e("v_lshrrev_b32 v8, 2, v0")
    e(f"v_mul_u32_u24 v8, {CSTR}, v8")
    e("v_and_b32 v9, 3, v0")
    e("v_lshl_add_u32 v8, v9, 4, v8")
    e("v_cmp_gt_u32 vcc, 32, v0")
    e("s_and_saveexec_b64 s[32:33], vcc")
    e("ds_write_b128 v8, v[20:23] offset:4096")
    e("s_mov_b64 exec, s[32:33]")
    e("s_waitcnt vmcnt(6)")
    for j in range(1, 8): e(f"v_mov_b32 v{39+j}, v{32+j}")
    for j in range(7): e(f"v_alignbit_b32 v{48+j}, v{33+j}, v{32+j}, 16")
    for j in range(1, 7): e(f"v_mov_b32 v{55+j}, v{48+j}")
    for c in range(8):
        ee = c >> 1
        if c & 1 == 0: b = (32 + ee) if ee % 2 == 0 else (40 + ee - 1)
        else: b = (48 + ee) if ee % 2 == 0 else (56 + ee - 1)
        e(f"ds_write_b128 v1, v[{b}:{b+3}] offset:{C_KR + c*CSTR}")
    e("s_waitcnt vmcnt(0)")
    k.stamp(1, 300)
    for j in range(4):
        e(f"v_lshlrev_b32 v{112+2*j}, 16, v{4+j}")
        e(f"v_and_b32 v{113+2*j}, 0xffff0000, v{4+j}")
    for p in range(8):
        e(f"v_sub_f32 v{120+p}, v{112+p}, v{96+2*p}")
        k.bfround(120+p)
        e(f"v_mul_f32 v{120+p}, v{120+p}, v{97+2*p}")
    for j in range(4):
        e(f"v_cvt_pk_bf16_f32 v{24+j}, v{120+2*j}, v{121+2*j}")
    e("v_lshrrev_b32 v28, 2, v0")
    e("v_mul_u32_u24 v28, 80, v28")
    e("v_and_b32 v29, 3, v0")
    e("v_lshl_add_u32 v28, v29, 4, v28")
    e(f"ds_write_b128 v28, v[24:27] offset:{C_U + 31*80}")
    for j in range(4):
        e(f"v_lshlrev_b32 v{120+2*j}, 16, v{24+j}")
        e(f"v_and_b32 v{121+2*j}, 0xffff0000, v{24+j}")
    e("v_lshlrev_b32 v13, 16, v13")
    e("v_lshrrev_b32 v30, 6, v0")
    e("s_nop 0")
    e("v_readfirstlane_b32 s40, v30")
    e("v_and_b32 v31, 31, v0")
    e("v_bfe_u32 v14, v0, 5, 1")
    e("v_lshlrev_b32 v15, 9, v30")
    e(f"v_sub_u32 v15, {2*(2047 - 224 - 7)}, v15")
    e("v_lshrrev_b32 v28, 3, v31")
    e("v_lshlrev_b32 v28, 4, v28")
    e("v_sub_u32 v15, v15, v28")
    e("v_lshl_add_u32 v15, v14, 4, v15")
    e("v_sub_u32 v28, 7, v31")
    e("v_and_b32 v28, 7, v28")
    e(f"v_mul_u32_u24 v28, {CSTR}, v28")
    e("v_add_u32 v15, v15, v28")
    e("v_subrev_u32 v16, 2048, v15")
    e("v_lshlrev_b32 v28, 3, v30")
    e("v_sub_u32 v28, v31, v28")
    e("v_add_u32 v28, 24, v28")
    e("v_mul_u32_u24 v28, 80, v28")
    e("v_lshl_add_u32 v28, v14, 4, v28")
    e(f"v_add_u32 v28, {C_U}, v28")
    for r in range(32): e(f"v_mov_b32 v{128+r}, 0")
    for r in range(16): e(f"v_mov_b32 v{96+r}, 0")
    e("s_waitcnt lgkmcnt(0)")
    k.stamp(2, 300)
    e("s_barrier")
    k.stamp(3, 300)
    def loads(j, sb):
        b = 32 + 32*sb
        offB = 80*(7-j); offA = 64*(7-j)
        e(f"ds_read_b128 v[{b}:{b+3}], v15 offset:{offA}")
        e(f"ds_read_b128 v[{b+4}:{b+7}], v28 offset:{offB+2560}")
        e(f"ds_read_b128 v[{b+8}:{b+11}], v28 offset:{offB}")
        e(f"ds_read_b128 v[{b+12}:{b+15}], v16 offset:{offA}")
        e(f"ds_read_b128 v[{b+16}:{b+19}], v15 offset:{offA+32}")
        e(f"ds_read_b128 v[{b+20}:{b+23}], v28 offset:{offB+2560+32}")
        e(f"ds_read_b128 v[{b+24}:{b+27}], v28 offset:{offB+32}")
        e(f"ds_read_b128 v[{b+28}:{b+31}], v16 offset:{offA+32}")
    loads(0, 0)
    for j in range(8):
        sb = j & 1
        if j < 7: loads(j+1, sb ^ 1)
        b = 32 + 32*sb
        for s_ in range(2):
            base = 8 if j < 7 else 0
            e(f"s_waitcnt lgkmcnt({base + 4*(1-s_)})")
            c = b + 16*s_
            e(f"v_mfma_f32_32x32x16_bf16 v[144:159], v[{c}:{c+3}], v[{c+4}:{c+7}], v[144:159]")
            e(f"v_mfma_f32_32x32x16_bf16 v[128:143], v[{c}:{c+3}], v[{c+8}:{c+11}], v[128:143]")
            e(f"v_mfma_f32_32x32x16_bf16 v[96:111], v[{c+12}:{c+15}], v[{c+8}:{c+11}], v[96:111]")
    e("s_barrier")
    e("s_nop 15\ns_nop 3")
    k.stamp(4, 300)
    for r in range(16): e(f"v_add_f32 v{144+r}, v{144+r}, v{96+r}")
    e("v_mul_u32_u24 v28, 9216, v30")
    e("v_mul_u32_u24 v29, 144, v31")
    e("v_add_u32 v28, v28, v29")
    e("v_lshl_add_u32 v28, v14, 4, v28")
    for tau in range(2):
        for g in range(4):
            b = 128 + 16*tau + 4*g
            e(f"ds_write_b128 v28, v[{b}:{b+3}] offset:{C_P + tau*4608 + 32*g}")
    e("s_waitcnt lgkmcnt(0)")
    e("s_barrier")
    k.stamp(5, 300)
    e("v_lshrrev_b32 v28, 2, v0")
    e("v_mul_u32_u24 v28, 144, v28")
    e("v_and_b32 v29, 3, v0")
    e("v_lshl_add_u32 v28, v29, 5, v28")
    for w in range(4):
        e(f"ds_read_b128 v[{32+8*w}:{35+8*w}], v28 offset:{C_P + w*9216}")
        e(f"ds_read_b128 v[{36+8*w}:{39+8*w}], v28 offset:{C_P + w*9216 + 16}")
    e("s_waitcnt lgkmcnt(0)")
    for p in range(8):
        e(f"v_add_f32 v{32+p}, v{32+p}, v{40+p}")
        e(f"v_add_f32 v{48+p}, v{48+p}, v{56+p}")
        e(f"v_add_f32 v{32+p}, v{32+p}, v{48+p}")
        k.bfround(32+p)
        e(f"v_mul_f32 v{40+p}, v{120+p}, v13")
        k.bfround(40+p)
        e(f"v_add_f32 v{32+p}, v{32+p}, v{40+p}")
        k.bfround(32+p)
        e(f"v_add_f32 v{32+p}, v{32+p}, v{112+p}")
    for j in range(4):
        e(f"v_cvt_pk_bf16_f32 v{24+j}, v{32+2*j}, v{33+2*j}")
    e("v_lshrrev_b32 v28, 2, v0")
    e("v_mul_u32_u24 v28, 40960, v28")
    e("v_and_b32 v29, 3, v0")
    e("v_lshl_add_u32 v28, v29, 4, v28")
    e("s_lshl_b32 s28, s2, 6")
    e("buffer_store_dwordx4 v[24:27], v28, s[12:15], s28 offen")
    k.stamp(6, 300)
    k.lab(lend)
    e("s_endpgm")
    return k
```

```python
from gen_common import *
from gen_gemm import QSCALE
LQ_LDS = 40960 + 2048

def gen_lnqkv(name, ws_xin):
    k = K(name); e = k.e
    k.lab(name)
    lend = name + "_end"
    e("s_cmp_ge_u32 s2, 256")
    e(f"s_cbranch_scc1 {lend}")
    k.stamp_init(); k.stamp(0, 30)
    e("s_load_dwordx2 s[6:7], s[0:1], 112")
    e("v_lshrrev_b32 v1, 6, v0")
    e("s_nop 0")
    e("v_readfirstlane_b32 s40, v1")
    e("s_lshr_b32 s3, s2, 2")
    e("s_and_b32 s4, s2, 3")
    e("s_mul_i32 s41, s4, 6")
    e("s_cmp_eq_u32 s4, 3")
    e("s_cselect_b32 s42, 1, 0")
    e("s_sub_u32 s41, s41, s42")
    e("s_cmp_ge_u32 s4, 2")
    e("s_cselect_b32 s42, 5, 6")
    e("s_add_u32 s41, s41, s40")
    e("s_waitcnt lgkmcnt(0)")
    k.srd(8, 6, ws_xin, XT_BYTES)
    k.srd(12, 6, WS_WQKVT, WQKVT_BYTES)
    k.srd(16, 6, WS_Q, Q_BYTES)
    k.srd(20, 6, WS_KV, KV_BYTES)
    e("v_and_b32 v5, 3, v0")
    e("v_lshrrev_b32 v6, 2, v0")
    e("v_lshlrev_b32 v7, 4, v0")
    e("s_mul_i32 s26, s3, 40960")
    for i in range(5):
        e(f"s_add_u32 s27, s26, {i*8192}")
        e(f"buffer_load_dwordx4 v[{8+4*i}:{11+4*i}], v7, s[8:11], s27 offen")
    e("v_and_b32 v2, 63, v0")
    e("v_lshlrev_b32 v4, 4, v2")
    e("v_lshlrev_b32 v7, 6, v6")
    e("v_lshl_add_u32 v7, v5, 4, v7")
    for i in range(5):
        e(f"s_waitcnt vmcnt({4-i})")
        e(f"ds_write_b128 v7, v[{8+4*i}:{11+4*i}] offset:{i*8192}")
    e("v_bfe_u32 v3, v2, 5, 1")
    e("v_bfe_u32 v5, v2, 2, 2")
    e("v_lshl_add_u32 v5, v3, 3, v5")
    e("v_lshlrev_b32 v5, 6, v5")
    e("v_bfe_u32 v6, v2, 4, 1")
    e("v_lshl_add_u32 v5, v6, 5, v5")
    e("v_and_b32 v6, 3, v2")
    e("v_lshl_add_u32 v5, v6, 3, v5")
    e("v_mul_u32_u24 v6, 5120, v1")
    e("v_add_u32 v5, v5, v6")
    e("s_waitcnt lgkmcnt(0)")
    k.stamp(1, 30)
    e("s_barrier")
    e("s_add_u32 s43, s3, s40")
    for j in range(4):
        e(f"s_add_u32 s44, s43, {j}")
        e("s_and_b32 s44, s44, 3")
        e("s_lshl_b32 s44, s44, 10")
        e(f"v_add_u32 v{92+j}, s44, v4")
    e("s_mul_i32 s27, s41, 40960")
    def abatch(b):
        lna = k.newlab("noa")
        e("s_cmp_ge_u32 s40, s42")
        e(f"s_cbranch_scc1 {lna}")
        for s in range(8*b, 8*b+8):
            e(f"buffer_load_dwordx4 v[{96+4*s}:{99+4*s}], v{92+s%4}, s[12:15], s27 offen")
            if s % 4 == 3: e("s_add_u32 s27, s27, 4096")
        k.lab(lna)
    for s in range(5):
        e(f"ds_read_b64_tr_b16 v[{8+4*s}:{9+4*s}], v5 offset:{s*1024}")
        e(f"ds_read_b64_tr_b16 v[{10+4*s}:{11+4*s}], v5 offset:{s*1024+256}")
    abatch(0)
    e("s_waitcnt lgkmcnt(0)")
    for j in range(20):
        e(f"v_lshlrev_b32 v{32+2*j}, 16, v{8+j}")
        e(f"v_and_b32 v{33+2*j}, 0xffff0000, v{8+j}")
    def wgsum(src, off, bt):
        e(f"v_mov_b32 v73, v{src}")
        e("s_nop 1")
        e(f"v_permlane32_swap_b32 v{src}, v73")
        e("s_nop 1")
        e(f"v_add_f32 v{src}, v{src}, v73")
        e("v_and_b32 v74, 31, v0")
        e("v_lshlrev_b32 v75, 7, v1")
        e("v_lshl_add_u32 v75, v74, 2, v75")
        e(f"ds_write_b32 v75, v{src} offset:{off}")
        abatch(bt)
        e("s_waitcnt lgkmcnt(0)")
        e("s_barrier")
        e("v_lshlrev_b32 v75, 2, v74")
        for w in range(8): e(f"ds_read_b32 v{76+w}, v75 offset:{off + 128*w}")
        e("s_waitcnt lgkmcnt(0)")
        e("v_add_f32 v76, v76, v77\nv_add_f32 v78, v78, v79\nv_add_f32 v80, v80, v81\nv_add_f32 v82, v82, v83")
        e("v_add_f32 v76, v76, v78\nv_add_f32 v80, v80, v82")
        e(f"v_add_f32 v{src}, v76, v80")
    for c in range(4): e(f"v_add_f32 v{84+c}, v{32+c}, v{36+c}")
    for j in range(8, 40, 4):
        for c in range(4): e(f"v_add_f32 v{84+c}, v{84+c}, v{32+j+c}")
    e("v_add_f32 v84, v84, v85\nv_add_f32 v86, v86, v87\nv_add_f32 v72, v84, v86")
    wgsum(72, 40960, 1)
    abatch(2)
    e("v_mul_f32 v72, 0x3acccccd, v72")
    for c in range(4): e(f"v_mov_b32 v{84+c}, 0")
    for j in range(40):
        e(f"v_sub_f32 v{88+(j&3)}, v{32+j}, v72")
        e(f"v_fma_f32 v{84+(j&3)}, v{88+(j&3)}, v{88+(j&3)}, v{84+(j&3)}")
    e("v_add_f32 v84, v84, v85\nv_add_f32 v86, v86, v87\nv_add_f32 v89, v84, v86")
    wgsum(89, 40960 + 1024, 3)
    abatch(4)
    e("v_mul_f32 v89, 0x3acccccd, v89")
    k.bfround(89); k.bfround(72)
    e("v_add_f32 v89, 0x3727c5ac, v89")
    k.bfround(89)
    e("v_sqrt_f32 v89, v89")
    e("s_nop 0")
    k.bfround(89)
    e("v_rcp_f32 v89, v89")
    e("s_nop 0")
    for j in range(40):
        e(f"v_sub_f32 v{32+j}, v{32+j}, v72")
    for j in range(20):
        e(f"v_cvt_pk_bf16_f32 v{8+j}, v{32+2*j}, v{33+2*j}")
    for j in range(20):
        e(f"v_lshlrev_b32 v{32+2*j}, 16, v{8+j}")
        e(f"v_and_b32 v{33+2*j}, 0xffff0000, v{8+j}")
    for j in range(40):
        e(f"v_mul_f32 v{32+j}, v{32+j}, v89")
    for j in range(20):
        e(f"v_cvt_pk_bf16_f32 v{8+j}, v{32+2*j}, v{33+2*j}")
    e("v_mul_u32_u24 v6, 5120, v1")
    e("v_add_u32 v6, v6, v4")
    for s in range(5):
        e(f"ds_write_b128 v6, v[{8+4*s}:{11+4*s}] offset:{s*1024}")
    e("s_waitcnt lgkmcnt(0)")
    k.stamp(2, 30)
    e("s_barrier")
    e("s_cmp_ge_u32 s40, s42")
    e(f"s_cbranch_scc1 {lend}")
    for r in range(32): e(f"v_mov_b32 v{56+r}, 0")
    NB = 6
    def ldb(s): e(f"ds_read_b128 v[{8+4*(s%NB)}:{11+4*(s%NB)}], v{92+s%4} offset:{(s//4)*4096}")
    for s in range(NB-1): ldb(s)
    for s in range(40):
        if s + NB - 1 < 40:
            ldb(s + NB - 1)
            e(f"s_waitcnt vmcnt({39-s}) lgkmcnt({NB-1})")
        else:
            e(f"s_waitcnt vmcnt({39-s}) lgkmcnt({39-s})")
        a = 56 + 16*(s & 1); b = 8 + 4*(s % NB)
        e(f"v_mfma_f32_32x32x16_bf16 v[{a}:{a+15}], v[{96+4*s}:{99+4*s}], v[{b}:{b+3}], v[{a}:{a+15}]")
    e("s_nop 15\ns_nop 3")
    for r in range(16): e(f"v_add_f32 v{56+r}, v{56+r}, v{72+r}")
    k.stamp(3, 30)
    a = 56
    e("v_and_b32 v2, 31, v0")
    lk = k.newlab("k"); lv = k.newlab("v")
    e("s_cmp_eq_u32 s41, 20")
    e(f"s_cbranch_scc1 {lk}")
    e("s_cmp_eq_u32 s41, 21")
    e(f"s_cbranch_scc1 {lv}")
    e(f"s_mov_b32 s30, {QSCALE:#x}")
    e("v_mul_u32_u24 v4, 1280, v2")
    e("v_lshl_add_u32 v4, v3, 3, v4")
    for r in range(16): e(f"v_mul_f32 v{a+r}, s30, v{a+r}")
    for j in range(8): e(f"v_cvt_pk_bf16_f32 v{8+j}, v{a+2*j}, v{a+2*j+1}")
    e("s_mul_i32 s28, s3, 40960")
    e("s_lshl_b32 s29, s41, 6")
    e("s_add_u32 s28, s28, s29")
    for g in range(4):
        e(f"buffer_store_dwordx2 v[{8+2*g}:{9+2*g}], v4, s[16:19], s28 offen offset:{16*g}")
    e("s_endpgm")
    def tileaddr():
        e("s_bfe_u32 s34, s3, 0x20003")
        e("s_mul_i32 s34, s34, 40960")
        e("s_lshr_b32 s35, s3, 5")
        e("s_lshl_b32 s35, s35, 3")
        e("s_and_b32 s31, s3, 7")
        e("s_add_u32 s31, s31, s35")
    k.lab(lk)
    tileaddr()
    for j in range(6): e(f"v_cvt_pk_bf16_f32 v{8+j}, v{a+2*j}, v{a+2*j+1}")
    e("v_lshlrev_b32 v4, 4, v2")
    e("v_lshl_add_u32 v4, v3, 3, v4")
    e("s_lshl_b32 s28, s31, 10")
    e("s_add_u32 s28, s28, s34")
    e("buffer_store_dwordx2 v[8:9], v4, s[20:23], s28 offen offset:0")
    e("buffer_store_dwordx2 v[10:11], v4, s[20:23], s28 offen offset:512")
    e("v_lshlrev_b32 v4, 3, v2")
    e("s_lshl_b32 s28, s31, 8")
    e("s_add_u32 s28, s28, 16384")
    e("s_add_u32 s28, s28, s34")
    e("v_cmp_eq_u32 vcc, 0, v3")
    e("s_and_saveexec_b64 s[32:33], vcc")
    e("buffer_store_dwordx2 v[12:13], v4, s[20:23], s28 offen")
    e("s_endpgm")
    k.lab(lv)
    tileaddr()
    for r in range(12): e(f"v_cvt_pk_bf16_f32 v{a+r}, v{a+r}, v{a+r}")
    e("v_lshrrev_b32 v4, 4, v2")
    e("v_mul_u32_u24 v4, 640, v4")
    e("v_bfe_u32 v5, v2, 2, 1")
    e("v_mul_u32_u24 v5, 320, v5")
    e("v_add_u32 v4, v4, v5")
    e("v_bfe_u32 v5, v2, 3, 1")
    e("v_lshl_add_u32 v4, v5, 3, v4")
    e("v_and_b32 v5, 3, v2")
    e("v_lshl_add_u32 v4, v5, 1, v4")
    e("v_lshl_add_u32 v4, v3, 6, v4")
    e("s_mul_i32 s28, s31, 1280")
    e("s_add_u32 s28, s28, 20480")
    e("s_add_u32 s28, s28, s34")
    for r in range(8):
        e(f"buffer_store_short v{a+r}, v4, s[20:23], s28 offen offset:{(8*(r>>2) + (r&3))*16}")
    e("v_cmp_eq_u32 vcc, 0, v3")
    e("s_and_saveexec_b64 s[32:33], vcc")
    for r in range(8, 12):
        e(f"buffer_store_short v{a+r}, v4, s[20:23], s28 offen offset:{(8*(r>>2) + (r&3))*16}")
    k.lab(lend)
    e("s_endpgm")
    return k
```

```python
from gen_common import *
import struct
def f2u(x): return struct.unpack('<I', struct.pack('<f', x))[0]
OP_LDS = 40960 + 2048

def gen_oproj(name, ws_xin, ws_xout, ws_stp, ws_stf, final):
    k = K(name); e = k.e
    k.lab(name)
    lend = name + "_end"
    e("s_cmp_ge_u32 s2, 256")
    e(f"s_cbranch_scc1 {lend}")
    k.stamp_init(); k.stamp(0, 100)
    e("s_load_dwordx2 s[6:7], s[0:1], 112")
    e("s_load_dwordx2 s[4:5], s[0:1], 96")
    e("s_load_dwordx2 s[44:45], s[0:1], 104")
    e("v_lshrrev_b32 v1, 6, v0")
    e("s_nop 0")
    e("v_readfirstlane_b32 s40, v1")
    e("s_lshr_b32 s3, s2, 2")
    e("s_and_b32 s34, s2, 3")
    e("s_mul_i32 s34, s34, 5")
    e("s_add_u32 s34, s34, s40")
    e("s_waitcnt lgkmcnt(0)")
    k.srd(8, 6, WS_WOT, WOT_BYTES)
    k.srd(12, 6, WS_O, Q_BYTES)
    k.srd(16, 6, ws_xin, XT_BYTES)
    if final: k.srd(20, 4, 0, XT_BYTES)
    else:
        k.srd(20, 6, ws_xout, XT_BYTES)
        k.srd(36, 6, ws_stp, 20*L*8)
        k.srd(48, 6, ws_stf, L*8)
        k.srd(52, 6, WS_CNT, CNT_BYTES)
    e("v_and_b32 v4, 63, v0")
    e("v_lshlrev_b32 v4, 4, v4")
    e("v_and_b32 v2, 31, v0")
    e("v_bfe_u32 v3, v0, 5, 1")
    e("s_lshl_b32 s24, s40, 13")
    e("s_mul_i32 s25, s3, 40960")
    e("s_add_u32 s25, s25, s24")
    for c in range(8):
        e("s_mov_b32 m0, s24")
        e("buffer_load_dwordx4 v4, s[12:15], s25 offen lds")
        if c < 7:
            e("s_add_u32 s24, s24, 1024")
            e("s_add_u32 s25, s25, 1024")
    e("v_lshlrev_b32 v6, 8, v3")
    e("v_lshl_add_u32 v6, v2, 1, v6")
    e("s_mul_i32 s35, s3, 40960")
    e("s_lshl_b32 s26, s34, 11")
    e("s_add_u32 s35, s35, s26")
    for r in range(16):
        col = 8*(r>>2) + (r&3)
        e(f"buffer_load_ushort v{40+r}, v6, s[16:19], s35 offen offset:{col*64}")
    e("s_add_u32 s41, s3, s40")
    for j in range(4):
        e(f"s_add_u32 s42, s41, {j}")
        e("s_and_b32 s42, s42, 3")
        e("s_lshl_b32 s42, s42, 10")
        e(f"v_add_u32 v{88+j}, s42, v4")
    e("s_mul_i32 s27, s34, 40960")
    for s in range(40):
        e(f"buffer_load_dwordx4 v[{96+4*s}:{99+4*s}], v{88+s%4}, s[8:11], s27 offen")
        if s % 4 == 3: e("s_add_u32 s27, s27, 4096")
    for r in range(32): e(f"v_mov_b32 v{56+r}, 0")
    e("s_waitcnt vmcnt(56)")
    e("s_barrier")
    k.stamp(1, 100)
    NB = 6
    def ldb(s): e(f"ds_read_b128 v[{8+4*(s%NB)}:{11+4*(s%NB)}], v{88+s%4} offset:{(s//4)*4096}")
    for s in range(NB-1): ldb(s)
    for s in range(40):
        if s + NB - 1 < 40:
            ldb(s + NB - 1)
            e(f"s_waitcnt vmcnt({39-s}) lgkmcnt({NB-1})")
        else:
            e(f"s_waitcnt vmcnt({39-s}) lgkmcnt({39-s})")
        a = 56 + 16*(s & 1); b = 8 + 4*(s % NB)
        e(f"v_mfma_f32_32x32x16_bf16 v[{a}:{a+15}], v[{96+4*s}:{99+4*s}], v[{b}:{b+3}], v[{a}:{a+15}]")
    e("s_nop 15\ns_nop 3")
    k.stamp(2, 100)
    a = 56
    for r in range(16): e(f"v_add_f32 v{a+r}, v{a+r}, v{72+r}")
    for r in range(16): k.bfround(a+r)
    for r in range(16):
        e(f"v_lshlrev_b32 v{40+r}, 16, v{40+r}")
        e(f"v_add_f32 v{a+r}, v{a+r}, v{40+r}")
    if final:
        e("v_mul_u32_u24 v4, 1280, v2")
        e("v_lshl_add_u32 v4, v3, 3, v4")
        for j in range(8): e(f"v_cvt_pk_bf16_f32 v{8+j}, v{a+2*j}, v{a+2*j+1}")
        e("s_mul_i32 s28, s3, 40960")
        e("s_lshl_b32 s29, s34, 6")
        e("s_add_u32 s28, s28, s29")
        for g in range(4):
            e(f"buffer_store_dwordx2 v[{8+2*g}:{9+2*g}], v4, s[20:23], s28 offen offset:{16*g}")
    else:
        e("v_lshlrev_b32 v5, 14, v3")
        e("v_lshl_add_u32 v5, v2, 1, v5")
        e("s_lshl_b32 s33, s34, 17")
        e("s_lshl_b32 s35, s3, 6")
        e("s_add_u32 s33, s33, s35")
        for r in range(16):
            col = 8*(r>>2) + (r&3)
            e(f"v_cvt_pk_bf16_f32 v{72+r}, v{a+r}, v{a+r}")
            e(f"s_add_u32 s35, s33, {col*4096}")
            e(f"buffer_store_short v{72+r}, v5, s[20:23], s35 offen")
        for r in range(16): e(f"v_lshlrev_b32 v{a+r}, 16, v{72+r}")
        e(f"v_add_f32 v41, v{a}, v{a+1}")
        e(f"v_add_f32 v42, v{a+2}, v{a+3}")
        for r in range(4, 16, 2):
            e(f"v_add_f32 v41, v41, v{a+r}")
            e(f"v_add_f32 v42, v42, v{a+r+1}")
        e("v_add_f32 v41, v41, v42")
        e("v_mov_b32 v42, v41\ns_nop 1\nv_permlane32_swap_b32 v41, v42\ns_nop 1\nv_add_f32 v44, v41, v42")
        e("v_mul_f32 v42, 0x3d000000, v44")
        e("v_mov_b32 v43, 0\nv_mov_b32 v46, 0")
        for r in range(0, 16, 2):
            e(f"v_sub_f32 v40, v{a+r}, v42")
            e(f"v_sub_f32 v47, v{a+r+1}, v42")
            e("v_fmac_f32 v43, v40, v40")
            e("v_fmac_f32 v46, v47, v47")
        e("v_add_f32 v43, v43, v46")
        e("v_mov_b32 v42, v43\ns_nop 1\nv_permlane32_swap_b32 v43, v42\ns_nop 1\nv_add_f32 v45, v43, v42")
        e("v_lshlrev_b32 v4, 3, v2")
        e("s_lshl_b32 s28, s40, 8")
        e("v_add_u32 v5, s28, v4")
        e("ds_write_b64 v5, v[44:45] offset:40960")
        e("s_waitcnt lgkmcnt(0)")
        e("s_barrier")
        e("s_cmp_lg_u32 s40, 0")
        e(f"s_cbranch_scc1 {lend}")
        for w in range(5): e(f"ds_read_b64 v[{56+2*w}:{57+2*w}], v4 offset:{40960 + 256*w}")
        e("s_waitcnt lgkmcnt(0)")
        def combine(n, cnt, inv_tot, so, mo):
            e(f"v_add_f32 v{so}, v56, v58")
            for g in range(2, n): e(f"v_add_f32 v{so}, v{so}, v{56+2*g}")
            e(f"v_add_f32 v{mo}, v57, v59")
            for g in range(2, n): e(f"v_add_f32 v{mo}, v{mo}, v{57+2*g}")
            e(f"v_mul_f32 v39, {f2u(inv_tot):#x}, v{so}")
            e("v_mov_b32 v42, 0")
            e(f"s_mov_b32 s28, {f2u(1.0/cnt):#x}")
            for g in range(n):
                e(f"v_fma_f32 v43, v{56+2*g}, s28, -v39")
                e("v_fmac_f32 v42, v43, v43")
            e(f"s_mov_b32 s28, {f2u(float(cnt)):#x}")
            e(f"v_fma_f32 v{mo}, v42, s28, v{mo}")
        combine(5, 32, 1.0/160, 44, 45)
        e("s_and_b32 s28, s2, 3")
        e("s_lshl_b32 s28, s28, 14")
        e("s_lshl_b32 s29, s3, 8")
        e("s_add_u32 s28, s28, s29")
        e("s_mov_b64 exec, 0xffffffff")
        e("buffer_store_dwordx2 v[44:45], v4, s[36:39], s28 offen sc1")
        e("s_waitcnt vmcnt(0)")
        e("v_mov_b32 v40, 1")
        e("s_lshl_b32 s28, s3, 7")
        e("v_mov_b32 v41, 0")
        e("s_mov_b64 exec, 1")
        e("buffer_atomic_add v40, v41, s[52:55], s28 offen sc0 sc1")
        e("s_waitcnt vmcnt(0)")
        e("s_mov_b64 exec, 0xffffffff")
        e("v_readfirstlane_b32 s28, v40")
        e("s_cmp_lg_u32 s28, 3")
        e(f"s_cbranch_scc1 {lend}")
        for g in range(4):
            e(f"s_add_u32 s28, s29, {g*16384}")
            e(f"buffer_load_dwordx2 v[{56+2*g}:{57+2*g}], v4, s[36:39], s28 offen sc1")
        e("s_waitcnt vmcnt(0)")
        combine(4, 160, 1.0/640, 44, 41)
        e("v_mov_b32 v40, v39")
        e("v_mul_f32 v41, 0x3acccccd, v41")
        k.bfround(40); k.bfround(41)
        e("v_add_f32 v41, 0x3727c5ac, v41")
        k.bfround(41)
        e("v_sqrt_f32 v41, v41")
        e("s_nop 0")
        k.bfround(41)
        e("v_rcp_f32 v41, v41")
        e("s_nop 0")
        e("buffer_store_dwordx2 v[40:41], v4, s[48:51], s29 offen")
    k.stamp(3, 100)
    k.lab(lend)
    e("s_endpgm")
    return k
```

```python
from gen_common import *
PREP_GRID = 824
PREP_LDS = 21504

def gen_prep():
    k = K("prep_kernel")
    e = k.e
    k.lab("prep_kernel")
    L_kgen = "prep_kgen"; L_tile = "prep_tile"; L_kv = "prep_kv"; L_end = "prep_end"; L_x0 = "prep_x0"
    e("s_load_dwordx16 s[16:31], s[0:1], 0")
    e("s_load_dwordx8 s[32:39], s[0:1], 64")
    e("s_load_dwordx2 s[40:41], s[0:1], 112")
    e("s_cmp_ge_u32 s2, 824")
    e(f"s_cbranch_scc1 {L_end}")
    e("s_sub_u32 s3, s2, 184")
    e("s_add_u32 s4, s2, 640")
    e("s_cmp_lt_u32 s2, 184")
    e("s_cselect_b32 s2, s4, s3")
    e("s_waitcnt lgkmcnt(0)")
    e("s_cmp_lt_u32 s2, 640")
    e(f"s_cbranch_scc1 {L_kgen}")
    e("s_cmp_lt_u32 s2, 740")
    e(f"s_cbranch_scc1 {L_tile}")
    e("s_cmp_lt_u32 s2, 804")
    e(f"s_cbranch_scc1 {L_x0}")
    e("s_cmp_lt_u32 s2, 824")
    e(f"s_cbranch_scc1 {L_kv}")
    e("s_endpgm")

    k.lab(L_kgen)
    k.stamp_init(); k.stamp(0, 300)
    k.srd(44, 18, 0, 640*128*2)
    k.srd(48, 20, 0, 640*128*2)
    k.srd(52, 22, 0, 640*128*2)
    k.srd(56, 24, 0, 640*128*2)
    k.srd(60, 26, 0, 640*2)
    k.srd(64, 40, WS_KR, KR_BYTES)
    e("s_lshl_b32 s3, s2, 8")
    e("s_lshl_b32 s4, s2, 1")
    e("v_and_b32 v1, 127, v0")
    e("v_lshlrev_b32 v1, 1, v1")
    e("v_mov_b32 v2, 0")
    e("buffer_load_ushort v4, v1, s[44:47], s3 offen")
    e("buffer_load_ushort v5, v1, s[48:51], s3 offen")
    e("buffer_load_ushort v6, v1, s[52:55], s3 offen")
    e("buffer_load_ushort v7, v1, s[56:59], s3 offen")
    e("buffer_load_ushort v8, v2, s[60:63], s4 offen")
    e("s_mov_b32 s5, 0x3fb8aa3b")
    e("s_mov_b32 s6, 0x3e22f983")
    e("s_waitcnt vmcnt(0)")
    k.stamp(1, 300)
    for r in (4,5,6,7,8): e(f"v_lshlrev_b32 v{r}, 16, v{r}")
    e("v_mul_f32 v8, s5, v8")
    e("v_exp_f32 v8, v8")
    e("v_mul_f32 v4, s5, v4")
    e("v_exp_f32 v4, v4")
    e("s_nop 1")
    k.bfround(8); k.bfround(4)
    e("v_mul_f32 v10, v4, v8")
    e("v_mul_f32 v11, v5, v8")
    e("v_mul_f32 v12, v6, v8")
    e("v_mul_f32 v13, v7, v8")
    e("v_mul_f32 v10, s5, v10")
    e("v_sub_f32 v10, 0, v10")
    e("v_mul_f32 v11, s6, v11")
    e("v_mul_f32 v12, 0x45000000, v12")
    e("v_mul_f32 v13, 0x45000000, v13")
    e("v_lshlrev_b32 v1, 3, v1")
    e("ds_write_b128 v1, v[10:13]")
    e("v_and_b32 v2, 15, v0")
    e("v_cvt_f32_u32 v20, v2")
    e("v_lshlrev_b32 v3, 4, v2")
    e("v_cvt_f32_u32 v21, v3")
    e("v_cmp_gt_u32 vcc, 8, v2")
    e("v_lshlrev_b32 v3, 5, v2")
    e("v_add_u32 v3, 256, v3")
    e("v_lshlrev_b32 v4, 6, v2")
    e("v_cndmask_b32 v3, v4, v3, vcc")
    e("v_cvt_f32_u32 v22, v3")
    e("v_lshlrev_b32 v3, 7, v2")
    e("v_add_u32 v3, 1024, v3")
    e("v_mov_b32 v4, 2048")
    e("v_cndmask_b32 v3, v4, v3, vcc")
    e("v_cvt_f32_u32 v23, v3")
    e("v_lshrrev_b32 v3, 6, v0")
    e("v_lshlrev_b32 v3, 9, v3")
    e("v_bfe_u32 v4, v0, 4, 2")
    e("v_lshl_add_u32 v9, v4, 6, v3")
    for r in range(16): e(f"v_mov_b32 v{96+r}, 0")
    e("s_waitcnt lgkmcnt(0)")
    e("s_barrier")
    k.stamp(2, 300)
    for j in range(8):
        e(f"ds_read_b128 v[{64+4*j}:{67+4*j}], v9 offset:{256*(j>>2) + 16*(j&3)}")
    for j in range(8):
        P = 64 + 4*j
        i = j & 3
        e(f"s_waitcnt lgkmcnt({7-j})")
        for q in range(4):
            e(f"v_mul_f32 v{30+q}, v{P}, v{20+q}")
            e(f"v_mul_f32 v{34+q}, v{P+1}, v{20+q}")
        for q in range(4):
            e(f"v_exp_f32 v{30+q}, v{30+q}")
            e(f"v_fract_f32 v{34+q}, v{34+q}")
        for q in range(4):
            e(f"v_cos_f32 v{38+q}, v{34+q}")
            e(f"v_sin_f32 v{34+q}, v{34+q}")
        e("s_nop 0")
        e("v_mul_f32 v44, v30, v38")
        e("v_mul_f32 v45, v30, v34")
        for q in range(1, 4):
            ar = 52 + 2*(q-1)
            e(f"v_mul_f32 v{ar}, v{P+2}, v{38+q}")
            e(f"v_mul_f32 v{ar+1}, v{P+3}, v{38+q}")
        for q in range(1, 4):
            ar = 52 + 2*(q-1)
            e(f"v_fma_f32 v{ar}, -v{P+3}, v{34+q}, v{ar}")
            e(f"v_fmac_f32 v{ar+1}, v{P+2}, v{34+q}")
        for q in range(1, 4):
            ar = 52 + 2*(q-1)
            e(f"v_mul_f32 v{ar}, v{30+q}, v{ar}")
            e(f"v_mul_f32 v{ar+1}, v{30+q}, v{ar+1}")
        for lv in range(3):
            a = 44 + 2*lv
            e(f"v_mul_f32 v{a+2}, v{a}, v{a}")
            e(f"v_add_f32 v{a+3}, v{a+1}, v{a+1}")
            e(f"v_fma_f32 v{a+2}, -v{a+1}, v{a+1}, v{a+2}")
            e(f"v_mul_f32 v{a+3}, v{a+3}, v{a}")
        for q in range(3):
            e(f"v_cvt_pk_f16_f32 v{(4,12,16)[q]+i}, v{52+2*q}, -v{53+2*q}")
        for q in range(4):
            e(f"v_cvt_pk_f16_f32 v{(24,60,112,116)[q]+i}, v{44+2*q}, v{45+2*q}")
        if i == 3:
            e("s_nop 1")
            e("v_mfma_f32_16x16x32_f16 v[96:99], v[4:7], v[24:27], v[96:99]")
            e("v_mfma_f32_16x16x32_f16 v[100:103], v[12:15], v[60:63], v[100:103]")
            e("v_mfma_f32_16x16x32_f16 v[104:107], v[12:15], v[112:115], v[104:107]")
            e("v_mfma_f32_16x16x32_f16 v[108:111], v[16:19], v[116:119], v[108:111]")
            e("s_nop 3")
    e("s_nop 15")
    k.stamp(3, 300)
    e("v_and_b32 v2, 63, v0")
    e("v_cmp_gt_u32 vcc, 32, v2")
    for r in range(4): e(f"v_cndmask_b32 v{100+r}, v{104+r}, v{100+r}, vcc")
    e("v_lshrrev_b32 v3, 6, v0")
    e("v_mul_u32_u24 v3, 3072, v3")
    e("v_bfe_u32 v4, v0, 4, 2")
    e("v_lshl_add_u32 v3, v4, 8, v3")
    e("v_and_b32 v4, 15, v0")
    e("v_lshl_add_u32 v3, v4, 2, v3")
    for r in range(4):
        e(f"ds_write_b32 v3, v{96+r} offset:{4096 + 64*r}")
        e(f"ds_write_b32 v3, v{100+r} offset:{4096 + 1024 + 64*r}")
        e(f"ds_write_b32 v3, v{108+r} offset:{4096 + 2048 + 64*r}")
    e("s_waitcnt lgkmcnt(0)")
    e("s_barrier")
    e("v_lshlrev_b32 v1, 2, v0")
    for c in range(3):
        for w in range(4):
            e(f"ds_read_b32 v{24+4*c+w}, v1 offset:{4096 + 3072*w + 1024*c}")
    e("s_waitcnt lgkmcnt(0)")
    for c in range(3):
        e(f"v_add_f32 v{24+4*c}, v{24+4*c}, v{25+4*c}")
        e(f"v_add_f32 v{26+4*c}, v{26+4*c}, v{27+4*c}")
        e(f"v_add_f32 v{24+4*c}, v{24+4*c}, v{26+4*c}")
        e(f"v_mul_f32 v{24+4*c}, 0x3a800000, v{24+4*c}")
    for c in range(3):
        e(f"ds_write_b32 v1, v{24+4*c} offset:{16384 + 1024*c}")
    e("s_waitcnt lgkmcnt(0)")
    e("s_barrier")
    k.stamp(4, 300)
    e("v_lshlrev_b32 v1, 3, v0")
    for i in range(8):
        a = 40 + i
        e(f"v_sub_u32 v{a}, {2047 - i}, v1")
        e(f"v_cvt_f32_u32 v2, v{a}")
        e("v_cvt_pk_bf16_f32 v2, v2, v2")
        e("v_and_b32 v2, 0xffff, v2")
        e(f"v_add_u32 v2, {256 - 17280}, v2")
        e(f"v_cmp_gt_u32 vcc, 256, v{a}")
        e("s_nop 1")
        e(f"v_cndmask_b32 v{a}, v2, v{a}, vcc")
        e(f"v_lshlrev_b32 v{a}, 2, v{a}")
    for i in range(8):
        e(f"ds_read_b32 v{40+i}, v{40+i} offset:16384")
    e("s_waitcnt lgkmcnt(0)")
    for i in range(4):
        e(f"v_cvt_pk_bf16_f32 v{48+i}, v{40+2*i}, v{41+2*i}")
    e(f"s_mul_i32 s8, s2, {KRL*2}")
    e("v_lshlrev_b32 v1, 4, v0")
    e("buffer_store_dwordx4 v[48:51], v1, s[64:67], s8 offen")
    k.stamp(5, 300)
    e("v_mov_b32 v52, 0\nv_mov_b32 v53, 0\nv_mov_b32 v54, 0\nv_mov_b32 v55, 0")
    e("v_cmp_gt_u32 vcc, 8, v0")
    e("s_and_saveexec_b64 s[10:11], vcc")
    e(f"s_cbranch_execz {L_end}")
    e("s_add_u32 s8, s8, 4096")
    e("buffer_store_dwordx4 v[52:55], v1, s[64:67], s8 offen")
    e(f"s_branch {L_end}")

    k.lab(L_tile)
    lq = k.newlab("tq"); lgo = k.newlab("tgo")
    e("s_cmp_lt_u32 s2, 690")
    e(f"s_cbranch_scc1 {lq}")
    k.srd(44, 38, 0, 640*1280); k.srd(48, 40, WS_WOT, WOT_BYTES)
    e("s_sub_u32 s13, s2, 690")
    e(f"s_branch {lgo}")
    k.lab(lq)
    k.srd(44, 32, 0, 640*1280); k.srd(48, 40, WS_WQKVT, WQKVT_BYTES)
    e("s_sub_u32 s13, s2, 640")
    k.lab(lgo)
    e("s_mul_i32 s3, s13, 52429")
    e("s_lshr_b32 s3, s3, 18")
    e("s_mul_i32 s4, s3, 5")
    e("s_sub_u32 s4, s13, s4")
    e("s_mul_i32 s5, s3, 81920")
    e("s_lshl_b32 s6, s4, 8")
    e("s_add_u32 s5, s5, s6")
    e("s_mul_i32 s6, s4, 163840")
    e("s_lshl_b32 s7, s3, 12")
    e("s_add_u32 s6, s6, s7")
    e("v_lshrrev_b32 v1, 4, v0")
    e("v_and_b32 v2, 15, v0")
    e("v_mul_u32_u24 v3, 1280, v1")
    e("v_lshl_add_u32 v3, v2, 4, v3")
    e("v_mul_u32_u24 v4, 272, v1")
    e("v_lshl_add_u32 v4, v2, 4, v4")
    for i in range(4):
        e(f"s_add_u32 s8, s5, {i*16*1280}")
        e(f"buffer_load_dwordx4 v[{8+4*i}:{11+4*i}], v3, s[44:47], s8 offen")
    e("s_waitcnt vmcnt(0)")
    for i in range(4):
        e(f"ds_write_b128 v4, v[{8+4*i}:{11+4*i}] offset:{i*16*272}")
    e("s_waitcnt lgkmcnt(0)")
    e("s_barrier")
    e("v_lshrrev_b32 v1, 6, v0")
    e("v_bfe_u32 v2, v0, 4, 2")
    e("v_and_b32 v3, 15, v0")
    e("v_lshrrev_b32 v4, 2, v3")
    e("v_and_b32 v5, 3, v3")
    e("v_lshl_add_u32 v6, v1, 4, v4")
    e("v_mul_u32_u24 v6, 272, v6")
    e("v_lshlrev_b32 v7, 5, v2")
    e("v_lshl_add_u32 v7, v5, 3, v7")
    e("v_add_u32 v6, v6, v7")
    for it in range(4):
        off = (it & 1) * 8 * 272 + (it >> 1) * 128
        e(f"ds_read_b64_tr_b16 v[{8+4*it}:{9+4*it}], v6 offset:{off}")
        e(f"ds_read_b64_tr_b16 v[{10+4*it}:{11+4*it}], v6 offset:{off + 4*272}")
    e("v_lshrrev_b32 v7, 1, v2")
    e("v_mul_u32_u24 v7, 40960, v7")
    e("v_lshl_add_u32 v7, v1, 10, v7")
    e("v_and_b32 v5, 31, v0")
    e("v_lshl_add_u32 v7, v5, 4, v7")
    e("s_add_u32 s9, s6, 81920")
    e("s_waitcnt lgkmcnt(0)")
    for it in range(4):
        so = "s6" if (it >> 1) == 0 else "s9"
        e(f"buffer_store_dwordx4 v[{8+4*it}:{11+4*it}], v7, s[48:51], {so} offen offset:{(it&1)*512}")
    e(f"s_branch {L_end}")

    k.lab(L_x0)
    XS = 672
    k.srd(44, 16, 0, XT_BYTES); k.srd(48, 40, WS_XT0, XT_BYTES); k.srd(52, 40, WS_STF0, STF_BYTES)
    e("s_sub_u32 s13, s2, 740")
    k.srd(56, 40, WS_CNT, CNT_BYTES)
    e("v_mov_b32 v1, 0")
    e("s_lshl_b32 s8, s13, 7")
    e("s_mov_b64 s[10:11], exec")
    e("s_mov_b64 exec, 1")
    e("buffer_store_dword v1, v1, s[56:59], s8 offen")
    e("s_mov_b64 exec, s[10:11]")
    e("s_mul_i32 s5, s13, 40960")
    e("v_lshrrev_b32 v1, 3, v0")
    e("v_and_b32 v2, 7, v0")
    e("v_mul_u32_u24 v3, 1280, v1")
    e("v_lshl_add_u32 v3, v2, 4, v3")
    e(f"v_mul_u32_u24 v4, {XS}, v1")
    e("v_lshl_add_u32 v4, v2, 4, v4")
    for i in range(10):
        e(f"buffer_load_dwordx4 v[{8+4*i}:{11+4*i}], v3, s[44:47], s5 offen offset:{128*i}")
    for i in range(5):
        e(f"s_waitcnt vmcnt({9-i})")
        e(f"ds_write_b128 v4, v[{8+4*i}:{11+4*i}] offset:{128*i}")
    e("s_waitcnt vmcnt(0)")
    def red8(v):
        e("s_nop 1")
        e(f"v_add_f32_dpp v{v}, v{v}, v{v} quad_perm:[1,0,3,2] row_mask:0xf bank_mask:0xf")
        e("s_nop 1")
        e(f"v_add_f32_dpp v{v}, v{v}, v{v} quad_perm:[2,3,0,1] row_mask:0xf bank_mask:0xf")
        e("s_nop 1")
        e(f"v_add_f32_dpp v{v}, v{v}, v{v} row_half_mirror row_mask:0xf bank_mask:0xf")
    e("v_mov_b32 v50, 0\nv_mov_b32 v51, 0\nv_mov_b32 v52, 0\nv_mov_b32 v53, 0")
    for j in range(40):
        e(f"v_lshlrev_b32 v54, 16, v{8+j}")
        e(f"v_and_b32 v55, 0xffff0000, v{8+j}")
        e(f"v_add_f32 v{50+2*(j&1)}, v{50+2*(j&1)}, v54")
        e(f"v_add_f32 v{51+2*(j&1)}, v{51+2*(j&1)}, v55")
    e("v_add_f32 v50, v50, v51\nv_add_f32 v52, v52, v53\nv_add_f32 v56, v50, v52")
    red8(56)
    e("v_mul_f32 v56, 0x3acccccd, v56")
    e("v_mov_b32 v50, 0\nv_mov_b32 v51, 0\nv_mov_b32 v52, 0\nv_mov_b32 v53, 0")
    for j in range(40):
        e(f"v_lshlrev_b32 v54, 16, v{8+j}")
        e(f"v_and_b32 v55, 0xffff0000, v{8+j}")
        e("v_sub_f32 v54, v54, v56")
        e("v_sub_f32 v55, v55, v56")
        e(f"v_fma_f32 v{50+2*(j&1)}, v54, v54, v{50+2*(j&1)}")
        e(f"v_fma_f32 v{51+2*(j&1)}, v55, v55, v{51+2*(j&1)}")
    e("v_add_f32 v50, v50, v51\nv_add_f32 v52, v52, v53\nv_add_f32 v57, v50, v52")
    red8(57)
    e("v_mul_f32 v57, 0x3acccccd, v57")
    k.bfround(56); k.bfround(57)
    e("v_add_f32 v57, 0x3727c5ac, v57")
    k.bfround(57)
    e("v_sqrt_f32 v57, v57")
    e("s_nop 0")
    k.bfround(57)
    e("v_rcp_f32 v57, v57")
    e("s_lshl_b32 s8, s13, 8")
    e("v_lshlrev_b32 v5, 3, v1")
    e("v_cmp_eq_u32 vcc, 0, v2")
    e("s_and_saveexec_b64 s[10:11], vcc")
    e("buffer_store_dwordx2 v[56:57], v5, s[52:55], s8 offen")
    e("s_mov_b64 exec, s[10:11]")
    e("v_lshrrev_b32 v1, 6, v0")
    e("v_bfe_u32 v2, v0, 4, 2")
    e("v_and_b32 v3, 15, v0")
    e("v_lshrrev_b32 v5, 2, v3")
    e("v_lshl_add_u32 v6, v2, 3, v5")
    e("v_and_b32 v5, 3, v3")
    e(f"v_mul_u32_u24 v6, {XS}, v6")
    e("v_lshl_add_u32 v6, v1, 5, v6")
    e("v_lshl_add_u32 v6, v5, 3, v6")
    e("v_lshl_add_u32 v7, v1, 4, v3")
    e("v_lshlrev_b32 v7, 12, v7")
    e("v_lshl_add_u32 v7, v2, 4, v7")
    e("s_lshl_b32 s6, s13, 6")
    for half in range(2):
        e("s_waitcnt lgkmcnt(0)")
        e("s_barrier")
        for it in range(5):
            e(f"ds_read_b64_tr_b16 v[{60+4*it}:{61+4*it}], v6 offset:{128*it}")
            e(f"ds_read_b64_tr_b16 v[{62+4*it}:{63+4*it}], v6 offset:{128*it + 4*XS}")
        for it in range(5):
            e(f"s_waitcnt lgkmcnt({2*(4-it)})")
            e(f"buffer_store_dwordx4 v[{60+4*it}:{63+4*it}], v7, s[48:51], s6 offen")
            e(f"s_add_u32 s6, s6, {64*4096}")
        if half == 0:
            e("s_barrier")
            for i in range(5, 10):
                e(f"ds_write_b128 v4, v[{8+4*i}:{11+4*i}] offset:{128*(i-5)}")
            e("s_waitcnt vmcnt(0)")
    e(f"s_branch {L_end}")

    k.lab(L_kv)
    lv = k.newlab("kvv"); lg2 = k.newlab("kvg")
    e("s_sub_u32 s13, s2, 804")
    e("s_cmp_lt_u32 s13, 10")
    e(f"s_cbranch_scc0 {lv}")
    k.srd(44, 34, 0, 640*40)
    e(f"s_branch {lg2}")
    k.lab(lv)
    k.srd(44, 36, 0, 640*40)
    k.lab(lg2)
    k.srd(52, 40, WS_WQKVT, WQKVT_BYTES)
    e("s_sub_u32 s4, s13, 10")
    e("s_cmp_lt_u32 s13, 10")
    e("s_cselect_b32 s3, s13, s4")
    e("s_mul_i32 s5, s3, 2560")
    e("v_lshrrev_b32 v1, 5, v0")
    e("v_and_b32 v2, 31, v0")
    e("v_mul_u32_u24 v3, 320, v1")
    e("v_lshl_add_u32 v3, v2, 1, v3")
    for i in range(8): e(f"v_mov_b32 v{12+i}, 0")
    e("v_cmp_gt_u32 vcc, 20, v2")
    e("s_and_saveexec_b64 s[10:11], vcc")
    for i in range(8):
        e(f"buffer_load_ushort v{12+i}, v3, s[44:47], s5 offen offset:{40*i}")
    e("s_mov_b64 exec, s[10:11]")
    e("s_lshl_b32 s6, s13, 12")
    e(f"s_add_u32 s6, s6, {20*40960}")
    e("v_lshlrev_b32 v4, 4, v0")
    e("s_waitcnt vmcnt(0)")
    for i in range(4): e(f"v_lshl_or_b32 v{8+i}, v{13+2*i}, 16, v{12+2*i}")
    e("buffer_store_dwordx4 v[8:11], v4, s[52:55], s6 offen")
    k.lab(L_end)
    e("s_endpgm")
    return k
```
